```python
import torch

def _softmax(x, axis=-1):
    return torch.softmax(x, dim=axis)
def _gelu(x):
    return torch.nn.functional.gelu(x, approximate="tanh")
def _silu(x):
    return torch.nn.functional.silu(x)
def _sigmoid(x):
    return torch.sigmoid(x)
def _layernorm(x, axis=-1, eps=1e-5):
    m = x.mean(dim=axis, keepdim=True)
    v = x.var(dim=axis, keepdim=True, unbiased=False)
    return (x - m) / torch.sqrt(v + eps)
def _scatter_add(tgt, idx, src, axis=0):
    return tgt.clone().index_add_(axis, idx, src)
def _segment_sum(src, seg, n):
    out = torch.zeros((n,) + src.shape[1:], dtype=src.dtype)
    return out.index_add_(0, seg, src)
def _pad(x, pw):
    flat = tuple(v for pair in reversed(pw) for v in pair)
    return torch.nn.functional.pad(x, flat)

kernel_name = 'standalone__deepnorm__sampling'

def setup_inputs():

    _w = (lambda a: (lambda t: t.to(torch.bfloat16) if t.is_floating_point() else t)(torch.as_tensor(a)))
    B, S, D = 1024, 16, 512
    return {
        "x": _w((lambda *s: torch.randn(*s, dtype=torch.bfloat16) * 0.05)(B, S, D)),
        "f": _w((lambda *s: torch.randn(*s, dtype=torch.bfloat16) * 0.05)(B, S, D)),
        "g": _w((lambda *s: torch.randn(*s, dtype=torch.bfloat16) * 0.05)(D) + 1.0),
        "b": _w((lambda *s: torch.randn(*s, dtype=torch.bfloat16) * 0.4)(D)),
        "alpha": _w(float(2.0)),
    }

def reference(x, f, g, b, alpha):
    return _layernorm(alpha * x + f, axis=-1) * g + b
```

```python
import sys, argparse

HEADER = """; Kernarg layout for this problem (64 bytes, ptrs only, base s[0:1]):
"""
NAME = "standalone__deepnorm__sampling_kernel"
NROWS = 16384

def gen(R=2, W=4, ld="", st=""):
    nblk = NROWS // (R * W)
    L = []
    a = L.append
    a(HEADER + f"; @launch grid=({nblk},1,1) block=({64*W},1,1) lds=0")
    a('.amdgcn_target "amdgcn-amd-amdhsa--gfx950"')
    a(".text")
    a(f".globl {NAME}")
    a(".p2align 8")
    a(f".type {NAME},@function")
    a(f"{NAME}:")
    a("    s_load_dwordx8 s[4:11], s[0:1], 0")
    a("    s_load_dwordx4 s[12:15], s[0:1], 32")
    a(f"    s_cmp_ge_u32 s2, {nblk}")
    a("    s_cbranch_scc1 L_end")
    import math
    lr = int(math.log2(R))
    a(f"    v_and_b32 v2, 63, v0")
    a(f"    v_lshlrev_b32 v2, 4, v2")
    a(f"    v_lshrrev_b32 v1, 6, v0")
    a(f"    v_lshlrev_b32 v1, {10+lr}, v1")
    a(f"    s_lshl_b32 s3, s2, {10+lr+int(math.log2(W))}")
    a(f"    v_add3_u32 v1, v1, v2, s3")
    a("    s_waitcnt lgkmcnt(0)")
    X = 4
    F = X + 4 * R
    G = F + 4 * R
    B = G + 4
    GU = B + 4
    BU = GU + 8
    H = BU + 8
    T = H + 8 * R
    for r in range(R):
        a(f"    global_load_dwordx4 v[{X+4*r}:{X+4*r+3}], v1, s[4:5] offset:{1024*r} {ld}")
        a(f"    global_load_dwordx4 v[{F+4*r}:{F+4*r+3}], v1, s[6:7] offset:{1024*r} {ld}")
    a(f"    global_load_dwordx4 v[{G}:{G+3}], v2, s[8:9]")
    a(f"    global_load_dwordx4 v[{B}:{B+3}], v2, s[10:11]")
    a("    s_load_dword s16, s[12:13], 0")
    a("    s_mov_b32 s20, 0xffff0000")
    a("    s_mov_b32 s22, 0x3b000000")
    a("    s_mov_b32 s23, 0x3727c5ac")
    a("    s_waitcnt lgkmcnt(0)")
    a("    s_lshl_b32 s16, s16, 16")
    for r in range(R):
        h = H + 8 * r
        a(f"    s_waitcnt vmcnt({2*(R-1-r)+2})")
        for j in range(4):
            xr = X + 4 * r + j
            fr = F + 4 * r + j
            a(f"    v_lshlrev_b32 v{T}, 16, v{xr}")
            a(f"    v_and_b32 v{T+1}, s20, v{xr}")
            a(f"    v_lshlrev_b32 v{h+2*j}, 16, v{fr}")
            a(f"    v_and_b32 v{h+2*j+1}, s20, v{fr}")
            a(f"    v_pk_fma_f32 v[{h+2*j}:{h+2*j+1}], v[{T}:{T+1}], s[16:17], v[{h+2*j}:{h+2*j+1}] op_sel_hi:[1,0,1]")
        a(f"    v_pk_add_f32 v[{T}:{T+1}], v[{h}:{h+1}], v[{h+2}:{h+3}]")
        a(f"    v_pk_add_f32 v[{T+2}:{T+3}], v[{h+4}:{h+5}], v[{h+6}:{h+7}]")
        a(f"    v_pk_add_f32 v[{T}:{T+1}], v[{T}:{T+1}], v[{T+2}:{T+3}]")
        a(f"    v_add_f32 v{T}, v{T}, v{T+1}")
        def reduce(reg):
            for d in ["quad_perm:[1,0,3,2] row_mask:0xf bank_mask:0xf",
                      "quad_perm:[2,3,0,1] row_mask:0xf bank_mask:0xf",
                      "row_half_mirror row_mask:0xf bank_mask:0xf",
                      "row_mirror row_mask:0xf bank_mask:0xf",
                      "row_bcast:15 row_mask:0xa bank_mask:0xf",
                      "row_bcast:31 row_mask:0xc bank_mask:0xf"]:
                a("    s_nop 1")
                a(f"    v_add_f32_dpp v{reg}, v{reg}, v{reg} {d}")
        reduce(T)
        a(f"    v_mul_f32 v{T}, s22, v{T}")
        a("    s_nop 0")
        a(f"    v_readlane_b32 s24, v{T}, 63")
        a("    s_nop 1")
        for j in range(4):
            a(f"    v_pk_add_f32 v[{h+2*j}:{h+2*j+1}], v[{h+2*j}:{h+2*j+1}], s[24:25] op_sel_hi:[1,0] neg_lo:[0,1] neg_hi:[0,1]")
        a(f"    v_pk_mul_f32 v[{T}:{T+1}], v[{h}:{h+1}], v[{h}:{h+1}]")
        a(f"    v_pk_mul_f32 v[{T+2}:{T+3}], v[{h+2}:{h+3}], v[{h+2}:{h+3}]")
        a(f"    v_pk_fma_f32 v[{T}:{T+1}], v[{h+4}:{h+5}], v[{h+4}:{h+5}], v[{T}:{T+1}]")
        a(f"    v_pk_fma_f32 v[{T+2}:{T+3}], v[{h+6}:{h+7}], v[{h+6}:{h+7}], v[{T+2}:{T+3}]")
        a(f"    v_pk_add_f32 v[{T}:{T+1}], v[{T}:{T+1}], v[{T+2}:{T+3}]")
        a(f"    v_add_f32 v{T}, v{T}, v{T+1}")
        reduce(T)
        a(f"    v_mov_b32 v{T+1}, s23")
        a(f"    v_fma_f32 v{T}, v{T}, s22, v{T+1}")
        a(f"    v_rsq_f32 v{T}, v{T}")
        a("    s_nop 0")
        a(f"    v_readlane_b32 s26, v{T}, 63")
        if r == 0:
            a(f"    s_waitcnt vmcnt(0)" if R == 1 else f"    s_waitcnt vmcnt(0)")
            for j in range(4):
                a(f"    v_lshlrev_b32 v{GU+2*j}, 16, v{G+j}")
                a(f"    v_and_b32 v{GU+2*j+1}, s20, v{G+j}")
                a(f"    v_lshlrev_b32 v{BU+2*j}, 16, v{B+j}")
                a(f"    v_and_b32 v{BU+2*j+1}, s20, v{B+j}")
        else:
            a("    s_nop 1")
        for j in range(4):
            a(f"    v_pk_mul_f32 v[{h+2*j}:{h+2*j+1}], v[{h+2*j}:{h+2*j+1}], s[26:27] op_sel_hi:[1,0]")
        for j in range(4):
            a(f"    v_pk_fma_f32 v[{h+2*j}:{h+2*j+1}], v[{h+2*j}:{h+2*j+1}], v[{GU+2*j}:{GU+2*j+1}], v[{BU+2*j}:{BU+2*j+1}]")
        o = X + 4 * r
        for j in range(4):
            a(f"    v_cvt_pk_bf16_f32 v{o+j}, v{h+2*j}, v{h+2*j+1}")
        a(f"    global_store_dwordx4 v1, v[{o}:{o+3}], s[14:15] offset:{1024*r} {st}")
    a("L_end:")
    a("    s_endpgm")
    nv = T + 4
    a('.section .rodata,"a"')
    a(".p2align 6")
    a(f".amdhsa_kernel {NAME}")
    a(f"  .amdhsa_next_free_vgpr {nv}")
    a(f"  .amdhsa_next_free_sgpr 32")
    a(f"  .amdhsa_accum_offset {(nv+3)//4*4}")
    a("  .amdhsa_group_segment_fixed_size 0")
    a("  .amdhsa_kernarg_size 64")
    a("  .amdhsa_user_sgpr_count 2")
    a("  .amdhsa_user_sgpr_kernarg_segment_ptr 1")
    a("  .amdhsa_system_sgpr_workgroup_id_x 1")
    a("  .amdhsa_float_denorm_mode_32 3")
    a(".end_amdhsa_kernel")
    return "\n".join(L) + "\n"

if __name__ == "__main__":
    p = argparse.ArgumentParser()
    p.add_argument("-R", type=int, default=2)
    p.add_argument("-W", type=int, default=4)
    p.add_argument("--ld", default="")
    p.add_argument("--st", default="")
    p.add_argument("-o", default="-")
    x = p.parse_args()
    s = gen(x.R, x.W, x.ld, x.st)
    if x.o == "-":
        print(s)
    else:
        open(x.o, "w").write(s)
```

```python
import sys, re
from gen1 import gen, NAME

def diag(mode, R=2, W=4, ld="", st="", mult=10):
    s = gen(R, W, ld, st)
    lines = s.split("\n")
    out = []
    nw = 16384 // R
    seen_lg = 0
    seen_vm = 0
    for ln in lines:
        if ln.startswith(NAME + ":"):
            out.append(ln)
            out.append("    s_memrealtime s[40:41]")
            out.append("    s_memtime s[56:57]")
            out.append("    s_load_dwordx2 s[50:51], s[0:1], 56")
            continue
        if "s_waitcnt lgkmcnt(0)" in ln and seen_lg == 0:
            out.append(ln)
            out.append("    s_memrealtime s[42:43]")
            seen_lg = 1
            continue
        if "s_waitcnt vmcnt(" in ln and seen_vm == 0:
            out.append(ln)
            out.append("    s_memrealtime s[44:45]")
            seen_vm = 1
            continue
        if ln.startswith("L_end:"):
            out.append("    s_memrealtime s[46:47]")
            out.append("    s_waitcnt vmcnt(0)")
            out.append("    s_memrealtime s[48:49]")
            out.append("    s_waitcnt lgkmcnt(0)")
            out.append("    v_lshrrev_b32 v2, 6, v0")
            out.append(f"    s_mul_i32 s3, s2, {W}")
            out.append("    v_add_u32 v2, s3, v2")
            out.append("    v_lshlrev_b32 v2, 5, v2")
            out.append("    v_mov_b32 v4, s40")
            out.append("    v_mov_b32 v5, s42")
            out.append("    v_mov_b32 v6, s44")
            out.append("    v_mov_b32 v7, s46")
            out.append("    v_mov_b32 v8, s48")
            out.append("    s_getreg_b32 s60, hwreg(HW_REG_XCC_ID)")
            out.append("    s_getreg_b32 s61, hwreg(HW_REG_HW_ID)")
            out.append("    v_mov_b32 v9, s60")
            out.append("    v_mov_b32 v10, s61")
            out.append("    v_mov_b32 v11, 0")
            out.append("    v_and_b32 v3, 63, v0")
            out.append("    v_cmp_eq_u32 vcc, 0, v3")
            out.append("    s_and_saveexec_b64 s[52:53], vcc")
            out.append("    global_store_dwordx4 v2, v[4:7], s[50:51] sc0 sc1")
            out.append("    global_store_dwordx4 v2, v[8:11], s[50:51] offset:16 sc0 sc1")
            out.append("    s_mov_b64 exec, s[52:53]")
            out.append("    v_readfirstlane_b32 s3, v0")
            out.append("    s_nop 3")
            out.append("    s_or_b32 s3, s3, s2")
            out.append("    s_cmp_lg_u32 s3, 0")
            out.append("    s_cbranch_scc1 L_end")
            if mode == "none":
                pass
            elif mode == "clk":
                out.append("L_spin_clk:")
                out.append("    s_memtime s[58:59]")
                out.append("    s_waitcnt lgkmcnt(0)")
                out.append("    s_sub_u32 s58, s58, s56")
                out.append("    s_cmp_lt_u32 s58, 100000")
                out.append("    s_cbranch_scc1 L_spin_clk")
            else:
                out.append("L_spin1:")
                out.append("    s_memrealtime s[58:59]")
                out.append("    s_waitcnt lgkmcnt(0)")
                out.append("    s_sub_u32 s58, s58, s40")
                out.append("    s_cmp_lt_u32 s58, 4000")
                out.append("    s_cbranch_scc1 L_spin1")
                if mode != "rt":
                    kind, k = mode[:3], int(mode[3:])
                    out.append("    v_lshlrev_b32 v2, 5, v0")
                    out.append("    v_mov_b32 v20, -1")
                    out.append("    v_mov_b32 v21, " + ("0" if kind == "max" else "-1"))
                    out.append(f"    s_mov_b32 s62, {nw//64}")
                    out.append("    s_sub_u32 s63, s40, 100000")
                    out.append("L_rd:")
                    out.append("    global_load_dwordx4 v[4:7], v2, s[50:51] sc0 sc1")
                    out.append("    global_load_dwordx4 v[8:11], v2, s[50:51] offset:16 sc0 sc1")
                    out.append("    s_waitcnt vmcnt(0)")
                    out.append("    v_subrev_u32 v4, s63, v4") if k != 0 else None
                    if k == 0:
                        out.append("    v_subrev_u32 v4, s63, v4")
                        out.append("    v_mov_b32 v12, v4")
                    else:
                        out.append(f"    v_subrev_u32 v12, s63, v{4+k}")
                    out.append("    v_min_u32 v20, v20, v4")
                    out.append(f"    v_{kind}_u32 v21, v21, v12")
                    out.append("    v_add_u32 v2, 2048, v2")
                    out.append("    s_sub_u32 s62, s62, 1")
                    out.append("    s_cmp_lg_u32 s62, 0")
                    out.append("    s_cbranch_scc1 L_rd")
                    out.append("    s_mov_b32 s64, -1")
                    out.append("    s_mov_b32 s65, " + ("0" if kind == "max" else "-1"))
                    out.append("    s_mov_b32 s62, 0")
                    out.append("L_red:")
                    out.append("    s_nop 4")
                    out.append("    v_readlane_b32 s66, v20, s62")
                    out.append("    v_readlane_b32 s67, v21, s62")
                    out.append("    s_nop 4")
                    out.append("    s_min_u32 s64, s64, s66")
                    out.append(f"    s_{kind}_u32 s65, s65, s67")
                    out.append("    s_add_u32 s62, s62, 1")
                    out.append("    s_cmp_lt_u32 s62, 64")
                    out.append("    s_cbranch_scc1 L_red")
                    out.append("    s_sub_u32 s65, s65, s64")
                    out.append("    s_min_u32 s65, s65, 3000")
                    out.append(f"    s_mul_i32 s65, s65, {mult}")
                    out.append("    s_add_u32 s65, s65, 30000")
                    out.append("L_spin2:")
                    out.append("    s_memrealtime s[58:59]")
                    out.append("    s_waitcnt lgkmcnt(0)")
                    out.append("    s_sub_u32 s58, s58, s40")
                    out.append("    s_cmp_lt_u32 s58, s65")
                    out.append("    s_cbranch_scc1 L_spin2")
            out.append(ln)
            continue
        ln = re.sub(r"next_free_sgpr \d+", "next_free_sgpr 72", ln)
        out.append(ln)
    return "\n".join(out)

if __name__ == "__main__":
    for m in sys.argv[1:]:
        open(f"v/diag_{m}.s", "w").write(diag(m))
```

```python
import sys, math
from gen1 import HEADER, NAME
NROWS = 16384

DPP16 = ["quad_perm:[1,0,3,2] row_mask:0xf bank_mask:0xf",
         "quad_perm:[2,3,0,1] row_mask:0xf bank_mask:0xf",
         "row_half_mirror row_mask:0xf bank_mask:0xf",
         "row_mirror row_mask:0xf bank_mask:0xf"]
DPP64 = DPP16 + ["row_bcast:15 row_mask:0xa bank_mask:0xf", "row_bcast:31 row_mask:0xc bank_mask:0xf"]

class Emit:
    def __init__(self): self.L = []
    def __call__(self, s): self.L.append(s)

def reduce_group(a, regs, tmp):
    G = len(regs)
    if G == 1:
        r = regs[0]
        for d in DPP64:
            a("    s_nop 1")
            a(f"    v_add_f32_dpp v{r}, v{r}, v{r} {d}")
        return r, [63]
    if G == 2:
        A, B = regs
        a("    s_nop 1")
        a(f"    v_permlane32_swap_b32 v{A}, v{B}")
        a(f"    v_add_f32 v{A}, v{A}, v{B}")
        for d in DPP16 + ["row_bcast:15 row_mask:0xa bank_mask:0xf"]:
            a("    s_nop 1")
            a(f"    v_add_f32_dpp v{A}, v{A}, v{A} {d}")
        return A, [31, 63]
    if G == 4:
        A, B, C, D = regs
        a("    s_nop 0")
        a(f"    v_permlane32_swap_b32 v{A}, v{B}")
        a(f"    v_permlane32_swap_b32 v{C}, v{D}")
        a(f"    v_add_f32 v{A}, v{A}, v{B}")
        a(f"    v_add_f32 v{C}, v{C}, v{D}")
        a("    s_nop 1")
        a(f"    v_permlane16_swap_b32 v{A}, v{C}")
        a(f"    v_add_f32 v{A}, v{A}, v{C}")
        for d in DPP16:
            a("    s_nop 1")
            a(f"    v_add_f32_dpp v{A}, v{A}, v{A} {d}")
        return A, [0, 32, 16, 48]

def gen(R=2, W=4, G=1, ld="nt", st="sc0 sc1", gb_first=True, prio=None, gbld="", stamps=False, head=None):
    nblk = NROWS // (R * W)
    a = Emit()
    a(HEADER + f"; @launch grid=({nblk},1,1) block=({64*W},1,1) lds=0")
    a('.amdgcn_target "amdgcn-amd-amdhsa--gfx950"')
    a(".text")
    a(f".globl {NAME}")
    a(".p2align 8")
    a(f".type {NAME},@function")
    a(f"{NAME}:")
    if stamps:
        a("    s_memrealtime s[40:41]")
        a("    s_load_dwordx2 s[50:51], s[0:1], 56")
    a("    s_load_dwordx8 s[4:11], s[0:1], 0")
    a("    s_load_dwordx4 s[12:15], s[0:1], 32")
    a(f"    s_cmp_ge_u32 s2, {nblk}")
    a("    s_cbranch_scc1 L_end")
    if prio is not None: a(f"    s_setprio 3")
    lr = int(math.log2(R))
    if W == 1:
        a(f"    v_lshlrev_b32 v2, 4, v0")
        a(f"    s_lshl_b32 s3, s2, {10+lr}")
        a(f"    v_add_u32 v1, s3, v2")
    else:
        a(f"    v_and_b32 v2, 63, v0")
        a(f"    v_lshlrev_b32 v2, 4, v2")
        a(f"    v_lshrrev_b32 v1, 6, v0")
        a(f"    v_lshlrev_b32 v1, {10+lr}, v1")
        a(f"    s_lshl_b32 s3, s2, {10+lr+int(math.log2(W))}")
        a(f"    v_add3_u32 v1, v1, v2, s3")
    ob = 0
    if R > 4:
        a(f"    v_add_u32 v1, 4096, v1")
        ob = -4096
    a("    s_mov_b32 s20, 0xffff0000")
    a("    s_mov_b32 s22, 0x3b000000")
    a("    s_waitcnt lgkmcnt(0)")
    if stamps: a("    s_memrealtime s[42:43]")
    X = 4
    F = X + 4 * R
    GP = F + 4 * R
    BP = GP + 4
    GU = BP + 4
    BU = GU + 8
    H = BU + 8
    T = H + 8 * G
    nv = T + 4 * G
    EPS = 3
    loads = []
    def ldrow(r):
        a(f"    global_load_dwordx4 v[{X+4*r}:{X+4*r+3}], v1, s[4:5] offset:{ob+1024*r} {ld}")
        a(f"    global_load_dwordx4 v[{F+4*r}:{F+4*r+3}], v1, s[6:7] offset:{ob+1024*r} {ld}")
        loads.extend([("x", r), ("f", r)])
    def ldgb():
        a(f"    global_load_dwordx4 v[{GP}:{GP+3}], v2, s[8:9] {gbld}")
        a(f"    global_load_dwordx4 v[{BP}:{BP+3}], v2, s[10:11] {gbld}")
        loads.extend([("g", 0), ("b", 0)])
    if gb_first == 1:
        ldgb()
        for r in range(R): ldrow(r)
    elif gb_first == 2:
        for r in range(G): ldrow(r)
        ldgb()
        for r in range(G, R): ldrow(r)
    else:
        for r in range(R): ldrow(r)
        ldgb()
    a("    s_load_dword s16, s[12:13], 0")
    a(f"    v_mov_b32 v{EPS}, 0x3727c5ac")
    if prio is not None: a(f"    s_setprio {prio}")
    issued = list(loads)
    done = [0]
    def wait_for(tag):
        idx = max(i for i, t in enumerate(issued) if t == tag)
        if idx + 1 > done[0]:
            a(f"    s_waitcnt vmcnt({len(issued)-1-idx})")
            done[0] = idx + 1
    gb_done = False
    def unpack_gb():
        wait_for(("b", 0))
        for j in range(4):
            a(f"    v_lshlrev_b32 v{GU+2*j}, 16, v{GP+j}")
            a(f"    v_and_b32 v{GU+2*j+1}, s20, v{GP+j}")
            a(f"    v_lshlrev_b32 v{BU+2*j}, 16, v{BP+j}")
            a(f"    v_and_b32 v{BU+2*j+1}, s20, v{BP+j}")
    if gb_first == 1:
        unpack_gb(); gb_done = True
    a("    s_waitcnt lgkmcnt(0)")
    a("    s_lshl_b32 s16, s16, 16")
    for g0 in range(0, R, G):
        rows = list(range(g0, g0 + G))
        for k, r in enumerate(rows):
            h = H + 8 * k; t = T + 4 * k
            wait_for(("f", r))
            if stamps and r == 0: a("    s_memrealtime s[44:45]")
            for j in range(4):
                xr = X + 4 * r + j; fr = F + 4 * r + j
                tt = t + 2 * (j & 1)
                a(f"    v_lshlrev_b32 v{tt}, 16, v{xr}")
                a(f"    v_and_b32 v{tt+1}, s20, v{xr}")
                a(f"    v_lshlrev_b32 v{h+2*j}, 16, v{fr}")
                a(f"    v_and_b32 v{h+2*j+1}, s20, v{fr}")
                a(f"    v_pk_fma_f32 v[{h+2*j}:{h+2*j+1}], v[{tt}:{tt+1}], s[16:17], v[{h+2*j}:{h+2*j+1}] op_sel_hi:[1,0,1]")
            a(f"    v_pk_add_f32 v[{t}:{t+1}], v[{h}:{h+1}], v[{h+2}:{h+3}]")
            a(f"    v_pk_add_f32 v[{t+2}:{t+3}], v[{h+4}:{h+5}], v[{h+6}:{h+7}]")
            a(f"    v_pk_add_f32 v[{t}:{t+1}], v[{t}:{t+1}], v[{t+2}:{t+3}]")
            a(f"    v_add_f32 v{t}, v{t}, v{t+1}")
        red, lanes = reduce_group(a, [T + 4 * k for k in range(G)], None)
        a(f"    v_mul_f32 v{red}, s22, v{red}")
        a("    s_nop 0")
        for k in range(G):
            a(f"    v_readlane_b32 s{24+2*k}, v{red}, {lanes[k]}")
        if G == 1: a("    s_nop 1")
        if G == 2: a("    s_nop 0")
        for k in range(G):
            h = H + 8 * k; t = T + 4 * k
            for j in range(4):
                a(f"    v_pk_add_f32 v[{h+2*j}:{h+2*j+1}], v[{h+2*j}:{h+2*j+1}], s[{24+2*k}:{25+2*k}] op_sel_hi:[1,0] neg_lo:[0,1] neg_hi:[0,1]")
            a(f"    v_pk_mul_f32 v[{t}:{t+1}], v[{h}:{h+1}], v[{h}:{h+1}]")
            a(f"    v_pk_mul_f32 v[{t+2}:{t+3}], v[{h+2}:{h+3}], v[{h+2}:{h+3}]")
            a(f"    v_pk_fma_f32 v[{t}:{t+1}], v[{h+4}:{h+5}], v[{h+4}:{h+5}], v[{t}:{t+1}]")
            a(f"    v_pk_fma_f32 v[{t+2}:{t+3}], v[{h+6}:{h+7}], v[{h+6}:{h+7}], v[{t+2}:{t+3}]")
            a(f"    v_pk_add_f32 v[{t}:{t+1}], v[{t}:{t+1}], v[{t+2}:{t+3}]")
            a(f"    v_add_f32 v{t}, v{t}, v{t+1}")
        red, lanes = reduce_group(a, [T + 4 * k for k in range(G)], None)
        a(f"    v_fma_f32 v{red}, v{red}, s22, v{EPS}")
        a(f"    v_rsq_f32 v{red}, v{red}")
        if not gb_done:
            unpack_gb(); gb_done = True
        else:
            a("    s_nop 0")
        for k in range(G):
            a(f"    v_readlane_b32 s{32+2*k}, v{red}, {lanes[k]}")
        if G == 1: a("    s_nop 1")
        if G == 2: a("    s_nop 0")
        for k, r in enumerate(rows):
            h = H + 8 * k
            for j in range(4):
                a(f"    v_pk_mul_f32 v[{h+2*j}:{h+2*j+1}], v[{h+2*j}:{h+2*j+1}], s[{32+2*k}:{33+2*k}] op_sel_hi:[1,0]")
            for j in range(4):
                a(f"    v_pk_fma_f32 v[{h+2*j}:{h+2*j+1}], v[{h+2*j}:{h+2*j+1}], v[{GU+2*j}:{GU+2*j+1}], v[{BU+2*j}:{BU+2*j+1}]")
            o = X + 4 * r
            for j in range(4):
                a(f"    v_cvt_pk_bf16_f32 v{o+j}, v{h+2*j}, v{h+2*j+1}")
            a(f"    global_store_dwordx4 v1, v[{o}:{o+3}], s[14:15] offset:{ob+1024*r} {st}")
            issued.append(("st", r))
    if stamps:
        from genmb import stamps_tail
        stamps_tail(a, W)
    a("L_end:")
    a("    s_endpgm")
    a('.section .rodata,"a"')
    a(".p2align 6")
    a(f".amdhsa_kernel {NAME}")
    a(f"  .amdhsa_next_free_vgpr {nv}")
    a(f"  .amdhsa_next_free_sgpr {72 if stamps else 40}")
    a(f"  .amdhsa_accum_offset {(nv+3)//4*4}")
    a("  .amdhsa_group_segment_fixed_size 0")
    a("  .amdhsa_kernarg_size 64")
    a("  .amdhsa_user_sgpr_count 2")
    a("  .amdhsa_user_sgpr_kernarg_segment_ptr 1")
    a("  .amdhsa_system_sgpr_workgroup_id_x 1")
    a("  .amdhsa_float_denorm_mode_32 3")
    a(".end_amdhsa_kernel")
    return "\n".join(a.L) + "\n"
```

```python
import sys, math
from gen1 import HEADER, NAME
from gen2 import DPP16, Emit
NROWS = 16384

def gen(W=4, ld="nt", st="sc0 sc1", prio=True, plain_from=None, st2="", stamps=False, pf=0, gb=2, onepass=False):
    R = 2
    nblk = NROWS // (R * W)
    a = Emit()
    a(HEADER + f"; @launch grid=({nblk},1,1) block=({64*W},1,1) lds=0")
    a('.amdgcn_target "amdgcn-amd-amdhsa--gfx950"')
    a(".text")
    a(f".globl {NAME}")
    a(".p2align 8")
    a(f".type {NAME},@function")
    a(f"{NAME}:")
    if stamps:
        a("    s_memrealtime s[40:41]")
        a("    s_load_dwordx2 s[50:51], s[0:1], 56")
    a("    s_load_dwordx8 s[4:11], s[0:1], 0")
    a("    s_load_dwordx4 s[12:15], s[0:1], 32")
    a(f"    s_cmp_ge_u32 s2, {nblk}")
    a("    s_cbranch_scc1 L_end")
    if prio: a("    s_setprio 3")
    a(f"    v_and_b32 v2, 63, v0")
    a(f"    v_lshlrev_b32 v2, 4, v2")
    a(f"    v_lshrrev_b32 v1, 6, v0")
    a(f"    v_lshlrev_b32 v1, 11, v1")
    a(f"    s_lshl_b32 s3, s2, {11+int(math.log2(W))}")
    a(f"    v_add3_u32 v1, v1, v2, s3")
    a("    s_waitcnt lgkmcnt(0)")
    if stamps: a("    s_memrealtime s[42:43]")
    X0, F0, X1, F1 = 4, 8, 12, 16
    GP, BP = 20, 24
    GU, BU = 28, 36
    T = 44
    nv = 52
    EPS = 3
    def ldrow(x, f, off):
        a(f"    global_load_dwordx4 v[{x}:{x+3}], v1, s[4:5] offset:{off} {ld}")
        a(f"    global_load_dwordx4 v[{f}:{f+3}], v1, s[6:7] offset:{off} {ld}")
    def ldgb():
        a(f"    global_load_dwordx4 v[{GP}:{GP+3}], v2, s[8:9]")
        a(f"    global_load_dwordx4 v[{BP}:{BP+3}], v2, s[10:11]")
    if gb == 1:
        ldgb(); ldrow(X0, F0, 0); ldrow(X1, F1, 1024); wg, w0, w1 = 4, 2, 0
    elif gb == 2:
        ldrow(X0, F0, 0); ldgb(); ldrow(X1, F1, 1024); w0, wg, w1 = 4, 2, 0
    else:
        ldrow(X0, F0, 0); ldrow(X1, F1, 1024); ldgb(); w0, w1, wg = 4, 2, 0
    a("    s_load_dword s16, s[12:13], 0")
    if prio: a("    s_setprio 0")
    if pf:
        a(f"    s_cmp_ge_u32 s2, {pf}")
        a("    s_cbranch_scc1 L_nopf")
        a("    s_getpc_b64 s[30:31]")
        for k in range(1, 14):
            a(f"    s_load_dwordx2 s[32:33], s[30:31], {64*k+128}")
        a("L_nopf:")
    a("    s_mov_b32 s20, 0xffff0000")
    a("    s_mov_b32 s22, 0x3b000000")
    a(f"    v_mov_b32 v{EPS}, 0x3727c5ac")
    def unpack_gb():
        a(f"    s_waitcnt vmcnt({wg})")
        for j in range(4):
            a(f"    v_lshlrev_b32 v{GU+2*j}, 16, v{GP+j}")
            a(f"    v_and_b32 v{GU+2*j+1}, s20, v{GP+j}")
            a(f"    v_lshlrev_b32 v{BU+2*j}, 16, v{BP+j}")
            a(f"    v_and_b32 v{BU+2*j+1}, s20, v{BP+j}")
    def hrow(x, f, acc, t):
        a(f"    v_lshlrev_b32 v{t}, 16, v{x}")
        a(f"    v_and_b32 v{t+1}, s20, v{x}")
        a(f"    v_lshlrev_b32 v{t+2}, 16, v{x+1}")
        a(f"    v_and_b32 v{t+3}, s20, v{x+1}")
        a(f"    v_lshlrev_b32 v{x}, 16, v{f}")
        a(f"    v_and_b32 v{x+1}, s20, v{f}")
        a(f"    v_lshlrev_b32 v{t+4}, 16, v{x+2}")
        a(f"    v_and_b32 v{t+5}, s20, v{x+2}")
        a(f"    v_lshlrev_b32 v{t+6}, 16, v{x+3}")
        a(f"    v_and_b32 v{t+7}, s20, v{x+3}")
        a(f"    v_lshlrev_b32 v{x+2}, 16, v{f+1}")
        a(f"    v_and_b32 v{x+3}, s20, v{f+1}")
        a(f"    v_pk_fma_f32 v[{x}:{x+1}], v[{t}:{t+1}], s[16:17], v[{x}:{x+1}] op_sel_hi:[1,0,1]")
        a(f"    v_lshlrev_b32 v{f}, 16, v{f+2}")
        a(f"    v_and_b32 v{f+1}, s20, v{f+2}")
        a(f"    v_pk_fma_f32 v[{x+2}:{x+3}], v[{t+2}:{t+3}], s[16:17], v[{x+2}:{x+3}] op_sel_hi:[1,0,1]")
        a(f"    v_lshlrev_b32 v{f+2}, 16, v{f+3}")
        a(f"    v_and_b32 v{f+3}, s20, v{f+3}")
        a(f"    v_pk_fma_f32 v[{f}:{f+1}], v[{t+4}:{t+5}], s[16:17], v[{f}:{f+1}] op_sel_hi:[1,0,1]")
        a(f"    v_pk_fma_f32 v[{f+2}:{f+3}], v[{t+6}:{t+7}], s[16:17], v[{f+2}:{f+3}] op_sel_hi:[1,0,1]")
        a(f"    v_pk_add_f32 v[{t}:{t+1}], v[{x}:{x+1}], v[{x+2}:{x+3}]")
        a(f"    v_pk_add_f32 v[{t+2}:{t+3}], v[{f}:{f+1}], v[{f+2}:{f+3}]")
        a(f"    v_pk_add_f32 v[{t}:{t+1}], v[{t}:{t+1}], v[{t+2}:{t+3}]")
        a(f"    v_add_f32 v{acc}, v{t}, v{t+1}")
    A, B = 2, 0
    if stamps: A, B = 52, 53; nv = 54
    if gb == 1: unpack_gb()
    a("    s_waitcnt lgkmcnt(0)")
    a("    s_lshl_b32 s16, s16, 16")
    a(f"    s_waitcnt vmcnt({w0})")
    if stamps: a("    s_memrealtime s[44:45]")
    hrow(X0, F0, A, T)
    if gb == 2: unpack_gb()
    a(f"    s_waitcnt vmcnt({w1})")
    hrow(X1, F1, B, T)
    def red():
        a("    s_nop 1")
        a(f"    v_permlane32_swap_b32 v{A}, v{B}")
        a(f"    v_add_f32 v{A}, v{A}, v{B}")
        for d in DPP16 + ["row_bcast:15 row_mask:0xa bank_mask:0xf"]:
            a("    s_nop 1")
            a(f"    v_add_f32_dpp v{A}, v{A}, v{A} {d}")
    red()
    a(f"    v_mul_f32 v{A}, s22, v{A}")
    a("    s_nop 0")
    a(f"    v_readlane_b32 s24, v{A}, 31")
    a(f"    v_readlane_b32 s26, v{A}, 63")
    a("    s_nop 0")
    for (h, s, t, acc) in [(X0, 24, T, A), (X1, 26, T + 4, B)]:
        for j in range(4):
            a(f"    v_pk_add_f32 v[{h+2*j}:{h+2*j+1}], v[{h+2*j}:{h+2*j+1}], s[{s}:{s+1}] op_sel_hi:[1,0] neg_lo:[0,1] neg_hi:[0,1]")
        a(f"    v_pk_mul_f32 v[{t}:{t+1}], v[{h}:{h+1}], v[{h}:{h+1}]")
        a(f"    v_pk_mul_f32 v[{t+2}:{t+3}], v[{h+2}:{h+3}], v[{h+2}:{h+3}]")
        a(f"    v_pk_fma_f32 v[{t}:{t+1}], v[{h+4}:{h+5}], v[{h+4}:{h+5}], v[{t}:{t+1}]")
        a(f"    v_pk_fma_f32 v[{t+2}:{t+3}], v[{h+6}:{h+7}], v[{h+6}:{h+7}], v[{t+2}:{t+3}]")
        a(f"    v_pk_add_f32 v[{t}:{t+1}], v[{t}:{t+1}], v[{t+2}:{t+3}]")
        a(f"    v_add_f32 v{acc}, v{t}, v{t+1}")
    red()
    a(f"    v_fma_f32 v{A}, v{A}, s22, v{EPS}")
    a(f"    v_rsq_f32 v{A}, v{A}")
    if gb == 0: unpack_gb()
    else: a("    s_nop 0")
    a(f"    v_readlane_b32 s28, v{A}, 31")
    a(f"    v_readlane_b32 s30, v{A}, 63")
    a("    s_nop 0")
    if plain_from is not None: a(f"    s_cmp_ge_u32 s2, {plain_from}")
    for n, (h, s, o, off) in enumerate([(X0, 28, T, 0), (X1, 30, T + 4, 1024)]):
        for j in range(4):
            a(f"    v_pk_mul_f32 v[{h+2*j}:{h+2*j+1}], v[{h+2*j}:{h+2*j+1}], s[{s}:{s+1}] op_sel_hi:[1,0]")
        for j in range(4):
            a(f"    v_pk_fma_f32 v[{h+2*j}:{h+2*j+1}], v[{h+2*j}:{h+2*j+1}], v[{GU+2*j}:{GU+2*j+1}], v[{BU+2*j}:{BU+2*j+1}]")
        for j in range(4):
            a(f"    v_cvt_pk_bf16_f32 v{o+j}, v{h+2*j}, v{h+2*j+1}")
        if plain_from is None:
            a(f"    global_store_dwordx4 v1, v[{o}:{o+3}], s[14:15] offset:{off} {st}")
        else:
            a(f"    s_cbranch_scc1 L_p{n}")
            a(f"    global_store_dwordx4 v1, v[{o}:{o+3}], s[14:15] offset:{off} {st}")
            a(f"    s_branch L_q{n}")
            a(f"L_p{n}:")
            a(f"    global_store_dwordx4 v1, v[{o}:{o+3}], s[14:15] offset:{off} {st2}")
            a(f"L_q{n}:")
    if stamps:
        from genmb import stamps_tail
        stamps_tail(a, W)
    a("L_end:")
    a("    s_endpgm")
    a('.section .rodata,"a"')
    a(".p2align 6")
    a(f".amdhsa_kernel {NAME}")
    a(f"  .amdhsa_next_free_vgpr {nv}")
    a(f"  .amdhsa_next_free_sgpr {72 if stamps else 40}")
    a(f"  .amdhsa_accum_offset {(nv+3)//4*4}")
    a("  .amdhsa_group_segment_fixed_size 0")
    a("  .amdhsa_kernarg_size 64")
    a("  .amdhsa_user_sgpr_count 2")
    a("  .amdhsa_user_sgpr_kernarg_segment_ptr 1")
    a("  .amdhsa_system_sgpr_workgroup_id_x 1")
    a("  .amdhsa_float_denorm_mode_32 3")
    a(".end_amdhsa_kernel")
    return "\n".join(a.L) + "\n"
```

```python
import sys, math
from gen1 import HEADER, NAME
NROWS = 16384

def stamps_tail(a, W):
    a("    s_memrealtime s[46:47]")
    a("    s_waitcnt vmcnt(0)")
    a("    s_memrealtime s[48:49]")
    a("    s_waitcnt lgkmcnt(0)")
    a("    v_lshrrev_b32 v2, 6, v0")
    a(f"    s_mul_i32 s3, s2, {W}")
    a("    v_add_u32 v2, s3, v2")
    a("    v_lshlrev_b32 v2, 5, v2")
    a("    v_mov_b32 v4, s40")
    a("    v_mov_b32 v5, s42")
    a("    v_mov_b32 v6, s44")
    a("    v_mov_b32 v7, s46")
    a("    v_mov_b32 v8, s48")
    a("    s_getreg_b32 s60, hwreg(HW_REG_XCC_ID)")
    a("    s_getreg_b32 s61, hwreg(HW_REG_HW_ID)")
    a("    v_mov_b32 v9, s60")
    a("    v_mov_b32 v10, s61")
    a("    v_mov_b32 v11, 0")
    a("    v_and_b32 v3, 63, v0")
    a("    v_cmp_eq_u32 vcc, 0, v3")
    a("    s_and_saveexec_b64 s[52:53], vcc")
    a("    global_store_dwordx4 v2, v[4:7], s[50:51] sc0 sc1")
    a("    global_store_dwordx4 v2, v[8:11], s[50:51] offset:16 sc0 sc1")

def mb(kind="copy", R=2, W=4, ld="", st="", vg=64, xcdmap=False, stamps=True, loc=False, g1=0, delay=0):
    nblk = NROWS // (R * W)
    L = []
    a = L.append
    a(HEADER + f"; @launch grid=({nblk},1,1) block=({64*W},1,1) lds=0")
    a('.amdgcn_target "amdgcn-amd-amdhsa--gfx950"')
    a(".text")
    a(f".globl {NAME}")
    a(".p2align 8")
    a(f".type {NAME},@function")
    a(f"{NAME}:")
    if stamps:
        a("    s_memrealtime s[40:41]")
        a("    s_load_dwordx2 s[50:51], s[0:1], 56")
    a("    s_load_dwordx8 s[4:11], s[0:1], 0")
    a("    s_load_dwordx4 s[12:15], s[0:1], 32")
    a(f"    s_cmp_ge_u32 s2, {nblk}")
    a("    s_cbranch_scc1 L_end")
    lr = int(math.log2(R))
    a(f"    v_and_b32 v2, 63, v0")
    a(f"    v_lshlrev_b32 v2, 4, v2")
    a(f"    v_lshrrev_b32 v1, 6, v0")
    a(f"    v_lshlrev_b32 v1, {10+lr}, v1")
    if loc:
        assert R*W == 8
        a(f"    s_load_dwordx2 s[24:25], s[0:1], 48")
        a(f"    s_getreg_b32 s22, hwreg(HW_REG_XCC_ID)")
        a(f"    s_lshr_b32 s22, s22, 2")
        a(f"    s_and_b32 s22, s22, 1")
        a(f"    s_lshr_b32 s20, s2, 3")
        a(f"    s_lshl_b32 s20, s20, 3")
        a(f"    s_and_b32 s21, s2, 3")
        a(f"    s_lshl_b32 s21, s21, 1")
        a(f"    s_add_u32 s20, s20, s21")
        a(f"    s_lshr_b32 s21, s20, 8")
        a(f"    s_and_b32 s21, s21, 1")
        a(f"    s_xor_b32 s22, s22, s21")
        if g1:
            a(f"    s_lshl_b32 s3, s2, 13")
            a(f"    s_cmp_lt_u32 s2, {g1}")
            a(f"    s_cbranch_scc1 L_go")
        if delay:
            a(f"    s_memrealtime s[28:29]")
            a(f"    s_waitcnt lgkmcnt(0)")
            a(f"    s_getreg_b32 s27, hwreg(HW_REG_XCC_ID)")
            a(f"    s_cmp_lt_u32 s27, 4")
            a(f"    s_cselect_b32 s27, 40, 0")
            a(f"    s_add_u32 s27, s27, {max(delay-40,1)}")
            a(f"L_dl:")
            a(f"    s_sleep 2")
            a(f"    s_memrealtime s[30:31]")
            a(f"    s_waitcnt lgkmcnt(0)")
            a(f"    s_sub_u32 s30, s30, s28")
            a(f"    s_cmp_lt_u32 s30, s27")
            a(f"    s_cbranch_scc1 L_dl")
        a(f"    s_waitcnt lgkmcnt(0)")
        a(f"    s_load_dword s26, s[24:25], 252")
        a(f"    s_waitcnt lgkmcnt(0)")
        a(f"    s_and_b32 s26, s26, 1")
        a(f"    s_xor_b32 s22, s22, s26")
        a(f"    s_add_u32 s20, s20, s22")
        a(f"    s_lshl_b32 s3, s20, 13")
        a(f"L_go:")
    elif xcdmap:
        a(f"    s_and_b32 s20, s2, 7")
        a(f"    s_lshr_b32 s21, s2, 3")
        a(f"    s_mul_i32 s20, s20, {nblk//8}")
        a(f"    s_add_u32 s20, s20, s21")
        a(f"    s_lshl_b32 s3, s20, {10+lr+int(math.log2(W))}")
    else:
        a(f"    s_lshl_b32 s3, s2, {10+lr+int(math.log2(W))}")
    a(f"    v_add3_u32 v1, v1, v2, s3")
    if R > 4:
        a(f"    v_add_u32 v1, 4096, v1")
    ob = -4096 if R > 4 else 0
    a("    s_waitcnt lgkmcnt(0)")
    if stamps: a("    s_memrealtime s[42:43]")
    X = 4
    F = X + 4 * R
    if kind in ("copy", "read"):
        for r in range(R):
            a(f"    global_load_dwordx4 v[{X+4*r}:{X+4*r+3}], v1, s[4:5] offset:{ob+1024*r} {ld}")
            a(f"    global_load_dwordx4 v[{F+4*r}:{F+4*r+3}], v1, s[6:7] offset:{ob+1024*r} {ld}")
    if kind == "rw":
        for r in range(R):
            a(f"    global_load_dwordx4 v[{X+4*r}:{X+4*r+3}], v1, s[4:5] offset:{ob+1024*r} {ld}")
            a(f"    global_load_dwordx4 v[{F+4*r}:{F+4*r+3}], v1, s[6:7] offset:{ob+1024*r} {ld}")
        for r in range(R):
            a(f"    global_store_dwordx4 v1, v[{F+4*R}:{F+4*R+3}], s[14:15] offset:{ob+1024*r} {st}")
    if kind == "wr":
        for r in range(R):
            a(f"    global_store_dwordx4 v1, v[{F+4*R}:{F+4*R+3}], s[14:15] offset:{ob+1024*r} {st}")
        for r in range(R):
            a(f"    global_load_dwordx4 v[{X+4*r}:{X+4*r+3}], v1, s[4:5] offset:{ob+1024*r} {ld}")
            a(f"    global_load_dwordx4 v[{F+4*r}:{F+4*r+3}], v1, s[6:7] offset:{ob+1024*r} {ld}")
    for r in range(R):
        if kind in ("copy", "read"):
            n = 2 * (R - 1 - r) + (r if kind == "copy" else 0)
            a(f"    s_waitcnt vmcnt({n})")
        if r == 0 and stamps:
            a("    s_memrealtime s[44:45]")
        if kind == "copy":
            for j in range(4):
                a(f"    v_xor_b32 v{X+4*r+j}, v{X+4*r+j}, v{F+4*r+j}")
        if kind in ("copy", "write"):
            a(f"    global_store_dwordx4 v1, v[{X+4*r}:{X+4*r+3}], s[14:15] offset:{ob+1024*r} {st}")
    if stamps: stamps_tail(a, W)
    a("L_end:")
    a("    s_endpgm")
    nv = max(vg, F + 4 * R + 4)
    a('.section .rodata,"a"')
    a(".p2align 6")
    a(f".amdhsa_kernel {NAME}")
    a(f"  .amdhsa_next_free_vgpr {nv}")
    a(f"  .amdhsa_next_free_sgpr 72")
    a(f"  .amdhsa_accum_offset {(nv+3)//4*4}")
    a("  .amdhsa_group_segment_fixed_size 0")
    a("  .amdhsa_kernarg_size 64")
    a("  .amdhsa_user_sgpr_count 2")
    a("  .amdhsa_user_sgpr_kernarg_segment_ptr 1")
    a("  .amdhsa_system_sgpr_workgroup_id_x 1")
    a("  .amdhsa_float_denorm_mode_32 3")
    a(".end_amdhsa_kernel")
    return "\n".join(L) + "\n"

if __name__ == "__main__":
    pass
```

```python
import gen3
from mk import build
fs=["v/v3_noprio.s","v/v3_base.s"]
def w(n,s):
    p=f"v/{n}.s"; open(p,"w").write(s); fs.append(p)
def pretouch(nwg, prio, first, arrs="xfo"):
    s=gen3.gen(prio=prio)
    L=s.split("\n"); out=[]; done=False
    code=[f"    s_cmp_ge_u32 s2, {nwg}", "    s_cbranch_scc1 L_npt",
          "    v_cmp_gt_u32 vcc, 8, v0", "    v_lshlrev_b32 v50, 21, v0", "    s_and_saveexec_b64 s[34:35], vcc", "    s_cbranch_execz L_rpt"]
    for c,(r,b) in zip("xfo",[(51,"s[4:5]"),(51,"s[6:7]"),(51,"s[14:15]")]):
        if c in arrs: code.append(f"    global_load_dword v{r}, v50, {b} offset:2048")
    code+=["L_rpt:", "    s_mov_b64 exec, s[34:35]", "L_npt:"]
    for ln in L:
        if first and "s_waitcnt lgkmcnt(0)" in ln and not done:
            out.append(ln); out+=code; done=True; continue
        if (not first) and "s_load_dword s16" in ln and not done:
            out+=code; done=True
            out.append(ln); continue
        out.append(ln)
    s="\n".join(out)
    if not first:
        pass
    return s
w("pt_first8",pretouch(8,False,True))
w("pt_first256",pretouch(256,False,True))
w("pt_first64",pretouch(64,False,True))
w("pt_first8_xf",pretouch(8,False,True,"xf"))
build(fs)
```

```python
import sys, math
from gen1 import HEADER, NAME
from gen2 import DPP16, Emit
NROWS = 16384

def gen(W=4, ld="nt", st="sc0 sc1", prio=3, fill=True, comments=False, amap='b', order='std', upfront=False):
    R = 2
    nblk = NROWS // (R * W)
    a = Emit()
    c = (lambda s: a("    ; " + s)) if comments else (lambda s: None)
    a(HEADER + f"; @launch grid=({nblk},1,1) block=({64*W},1,1) lds=0")
    a('.amdgcn_target "amdgcn-amd-amdhsa--gfx950"')
    a(".text")
    a(f".globl {NAME}")
    a(".p2align 8")
    a(f".type {NAME},@function")
    a(f"{NAME}:")
    if upfront:
        a("    s_load_dwordx8 s[4:11], s[0:1], 0")
        a("    s_load_dwordx4 s[12:15], s[0:1], 32")
    else:
        a("    s_load_dwordx4 s[4:7], s[0:1], 0")
    a(f"    s_cmpk_ge_u32 s2, {nblk}")
    a("    s_cbranch_scc1 L_end")
    if prio is not None: a(f"    s_setprio {prio}")
    VB = 1; OFFA, OFFB = -4096, 0
    if amap == 's8':
        a("    s_lshl_b32 s3, s2, 13")
        a("    s_bitcmp1_b32 s2, 0")
        a("    s_cselect_b32 s21, 0, 4096")
        a("    s_add_u32 s3, s3, s21")
        a("    v_lshl_add_u32 v1, v0, 4, s3")
        a("    v_add_u32 v52, 4096, v1")
        VB = 52
    elif amap == 's8x':
        if W == 4:
            a("    s_lshl_b32 s3, s2, 13")
            a("    s_bitcmp1_b32 s2, 0")
            a("    s_cselect_b32 s21, 4096, 0")
            a("    s_sub_u32 s3, s3, s21")
        elif W == 8:
            a("    s_lshl_b32 s3, s2, 14")
        else:
            lg = {2: 2, 1: 3}[W]
            a(f"    s_lshr_b32 s3, s2, {lg}")
            a("    s_lshl_b32 s3, s3, 14")
            a(f"    s_and_b32 s21, s2, {(1<<lg)-1}")
            a(f"    s_lshl_b32 s21, s21, {13-lg}")
            a("    s_add_u32 s3, s3, s21")
        if W == 1:
            a("    s_bfe_u32 s21, s2, 0x10003")
            a("    s_lshl_b32 s21, s21, 13")
            a("    s_add_u32 s3, s3, s21")
            a("    v_lshl_add_u32 v1, v0, 4, s3")
        else:
            a("    v_lshl_add_u32 v1, v0, 4, s3")
            a("    v_bfe_u32 v3, v0, 6, 1")
            a("    v_lshl_add_u32 v1, v3, 13, v1")
        a("    v_xor_b32 v52, 0x2000, v1")
        VB = 52; OFFA = 0
    elif amap == 'plain':
        a("    s_lshl_b32 s3, s2, 13")
        a("    s_bitset1_b32 s3, 12")
        a("    v_lshl_add_u32 v1, v0, 4, s3")
    elif W == 4:
        a("    s_and_b32 s21, s2, 1")
        a("    s_mulk_i32 s21, -6144")
        a("    s_lshl_b32 s3, s2, 13")
        a("    s_add_u32 s3, s3, s21")
        a("    s_addk_i32 s3, 4096")
        a("    s_movk_i32 s21, 6144")
        a("    v_lshrrev_b32 v3, 7, v0")
        a("    v_lshl_add_u32 v1, v0, 4, s3")
        a("    v_mad_u32_u24 v1, v3, s21, v1")
    else:
        lw = int(math.log2(W))
        a(f"    s_lshl_b32 s3, s2, {11+lw}")
        a("    s_bitset1_b32 s3, 12")
        a("    v_lshrrev_b32 v3, 8, v0")
        a("    v_lshl_add_u32 v1, v0, 4, s3")
        a("    v_lshl_add_u32 v1, v3, 12, v1")
    if upfront:
        a("    v_and_b32 v2, 63, v0")
        a("    v_lshlrev_b32 v2, 4, v2")
    a("    s_waitcnt lgkmcnt(0)")
    X0, F0, X1, F1 = 4, 8, 12, 16
    GP, BP = 20, 24
    GU, BU = 28, 36
    T = 44
    nv = 53 if VB == 52 else 52
    EPS = 3
    A, B = 2, 0
    def ld1(reg, base, row):
        va, off = (1, OFFA) if row == 0 else (VB, OFFB)
        a(f"    global_load_dwordx4 v[{reg}:{reg+3}], v{va}, {base} offset:{off} {ld}")
    def gbp():
        if not upfront:
            a("    s_load_dwordx8 s[8:15], s[0:1], 16")
            a("    v_and_b32 v2, 63, v0")
            a("    v_lshlrev_b32 v2, 4, v2")
            a("    s_waitcnt lgkmcnt(0)")
        a(f"    global_load_dwordx4 v[{GP}:{GP+3}], v2, s[8:9]")
        a(f"    global_load_dwordx4 v[{BP}:{BP+3}], v2, s[10:11]")
        a("    s_load_dword s16, s[12:13], 0")
    if order == 'std':
        ld1(X0, "s[4:5]", 0); ld1(F0, "s[6:7]", 0); gbp(); ld1(X1, "s[4:5]", 1); ld1(F1, "s[6:7]", 1); W0, WG_, W1 = 4, 2, 0
    elif order == 'cross':
        ld1(X0, "s[4:5]", 0); ld1(F1, "s[6:7]", 1); gbp(); ld1(X1, "s[4:5]", 1); ld1(F0, "s[6:7]", 0); W0, WG_, W1 = 0, 2, 1
    elif order == 'xxffgb':
        ld1(X0, "s[4:5]", 0); ld1(X1, "s[4:5]", 1); ld1(F0, "s[6:7]", 0); ld1(F1, "s[6:7]", 1); gbp(); W0, WG_, W1 = 3, 0, 2
    elif order == 'xxff_lowgb':
        ld1(X0, "s[4:5]", 0); ld1(X1, "s[4:5]", 1); ld1(F0, "s[6:7]", 0); ld1(F1, "s[6:7]", 1); a("    s_setprio 0"); gbp(); W0, WG_, W1 = 3, 0, 2
    elif order == 'gbxxff':
        gbp(); ld1(X0, "s[4:5]", 0); ld1(X1, "s[4:5]", 1); ld1(F0, "s[6:7]", 0); ld1(F1, "s[6:7]", 1); W0, WG_, W1 = 1, 4, 0
    elif order == 'xxff':
        ld1(X0, "s[4:5]", 0); ld1(X1, "s[4:5]", 1); gbp(); ld1(F0, "s[6:7]", 0); ld1(F1, "s[6:7]", 1); W0, WG_, W1 = 1, 2, 0
    if prio is not None: a("    s_setprio 0")
    a("    s_mov_b32 s20, 0xffff0000")
    a("    s_mov_b32 s22, 0x3b000000")
    a(f"    v_mov_b32 v{EPS}, 0x3727c5ac")
    def hrow(x, f, acc, t):
        a(f"    v_lshlrev_b32 v{t}, 16, v{x}")
        a(f"    v_and_b32 v{t+1}, s20, v{x}")
        a(f"    v_lshlrev_b32 v{t+2}, 16, v{x+1}")
        a(f"    v_and_b32 v{t+3}, s20, v{x+1}")
        a(f"    v_lshlrev_b32 v{x}, 16, v{f}")
        a(f"    v_and_b32 v{x+1}, s20, v{f}")
        a(f"    v_lshlrev_b32 v{t+4}, 16, v{x+2}")
        a(f"    v_and_b32 v{t+5}, s20, v{x+2}")
        a(f"    v_lshlrev_b32 v{t+6}, 16, v{x+3}")
        a(f"    v_and_b32 v{t+7}, s20, v{x+3}")
        a(f"    v_lshlrev_b32 v{x+2}, 16, v{f+1}")
        a(f"    v_and_b32 v{x+3}, s20, v{f+1}")
        a(f"    v_pk_fma_f32 v[{x}:{x+1}], v[{t}:{t+1}], s[16:17], v[{x}:{x+1}] op_sel_hi:[1,0,1]")
        a(f"    v_lshlrev_b32 v{f}, 16, v{f+2}")
        a(f"    v_and_b32 v{f+1}, s20, v{f+2}")
        a(f"    v_pk_fma_f32 v[{x+2}:{x+3}], v[{t+2}:{t+3}], s[16:17], v[{x+2}:{x+3}] op_sel_hi:[1,0,1]")
        a(f"    v_lshlrev_b32 v{f+2}, 16, v{f+3}")
        a(f"    v_and_b32 v{f+3}, s20, v{f+3}")
        a(f"    v_pk_fma_f32 v[{f}:{f+1}], v[{t+4}:{t+5}], s[16:17], v[{f}:{f+1}] op_sel_hi:[1,0,1]")
        a(f"    v_pk_add_f32 v[{t}:{t+1}], v[{x}:{x+1}], v[{x+2}:{x+3}]")
        a(f"    v_pk_fma_f32 v[{f+2}:{f+3}], v[{t+6}:{t+7}], s[16:17], v[{f+2}:{f+3}] op_sel_hi:[1,0,1]")
        a(f"    v_pk_add_f32 v[{t}:{t+1}], v[{t}:{t+1}], v[{f}:{f+1}]")
        a(f"    v_pk_add_f32 v[{t}:{t+1}], v[{t}:{t+1}], v[{f+2}:{f+3}]")
        a(f"    v_add_f32 v{acc}, v{t}, v{t+1}")
    def red2(fillers):
        fillers = list(fillers)
        def gap():
            n = 0
            while n < 2 and fillers:
                a(fillers.pop(0)); n += 1
            if n == 0: a("    s_nop 1")
            elif n == 1: a("    s_nop 0")
        gap()
        a(f"    v_permlane32_swap_b32 v{A}, v{B}")
        a(f"    v_add_f32 v{A}, v{A}, v{B}")
        for d in DPP16 + ["row_bcast:15 row_mask:0xa bank_mask:0xf"]:
            gap()
            a(f"    v_add_f32_dpp v{A}, v{A}, v{A} {d}")
        assert not fillers
    a("    s_waitcnt lgkmcnt(0)")
    a("    s_lshl_b32 s16, s16, 16")
    def unp():
        a(f"    s_waitcnt vmcnt({WG_})")
        for j in range(4):
            a(f"    v_lshlrev_b32 v{GU+2*j}, 16, v{GP+j}")
            a(f"    v_and_b32 v{GU+2*j+1}, s20, v{GP+j}")
            a(f"    v_lshlrev_b32 v{BU+2*j}, 16, v{BP+j}")
            a(f"    v_and_b32 v{BU+2*j+1}, s20, v{BP+j}")
    seq = sorted([(W0, 'r0'), (WG_, 'gb'), (W1, 'r1')], reverse=True)
    for cnt, what in seq:
        if what == 'gb': unp()
        else:
            a(f"    s_waitcnt vmcnt({cnt})")
            hrow(X0, F0, A, T) if what == 'r0' else hrow(X1, F1, B, T)
    red2([])
    a(f"    v_mul_f32 v{A}, s22, v{A}")
    a("    s_nop 0")
    a(f"    v_readlane_b32 s24, v{A}, 31")
    a(f"    v_readlane_b32 s26, v{A}, 63")
    a("    s_nop 0")
    for (h, s, t, acc) in [(X0, 24, T, A), (X1, 26, T + 4, B)]:
        for j in range(4):
            a(f"    v_pk_add_f32 v[{h+2*j}:{h+2*j+1}], v[{h+2*j}:{h+2*j+1}], s[{s}:{s+1}] op_sel_hi:[1,0] neg_lo:[0,1] neg_hi:[0,1]")
        a(f"    v_pk_mul_f32 v[{t}:{t+1}], v[{h}:{h+1}], v[{h}:{h+1}]")
        a(f"    v_pk_mul_f32 v[{t+2}:{t+3}], v[{h+2}:{h+3}], v[{h+2}:{h+3}]")
        a(f"    v_pk_fma_f32 v[{t}:{t+1}], v[{h+4}:{h+5}], v[{h+4}:{h+5}], v[{t}:{t+1}]")
        a(f"    v_pk_fma_f32 v[{t+2}:{t+3}], v[{h+6}:{h+7}], v[{h+6}:{h+7}], v[{t+2}:{t+3}]")
        a(f"    v_pk_add_f32 v[{t}:{t+1}], v[{t}:{t+1}], v[{t+2}:{t+3}]")
        a(f"    v_add_f32 v{acc}, v{t}, v{t+1}")
    dg = [f"    v_pk_mul_f32 v[{h+2*j}:{h+2*j+1}], v[{h+2*j}:{h+2*j+1}], v[{GU+2*j}:{GU+2*j+1}]" for h in (X0, X1) for j in range(4)]
    red2(dg)
    a(f"    v_fma_f32 v{A}, v{A}, s22, v{EPS}")
    a(f"    v_rsq_f32 v{A}, v{A}")
    a("    s_nop 0")
    a(f"    v_readlane_b32 s28, v{A}, 31")
    a(f"    v_readlane_b32 s30, v{A}, 63")
    a("    s_nop 0")
    for (h, s, o, va, off) in [(X0, 28, T, 1, OFFA), (X1, 30, T + 4, VB, OFFB)]:
        for j in range(4):
            a(f"    v_pk_fma_f32 v[{h+2*j}:{h+2*j+1}], v[{h+2*j}:{h+2*j+1}], s[{s}:{s+1}], v[{BU+2*j}:{BU+2*j+1}] op_sel_hi:[1,0,1]")
        for j in range(4):
            a(f"    v_cvt_pk_bf16_f32 v{o+j}, v{h+2*j}, v{h+2*j+1}")
        a(f"    global_store_dwordx4 v{va}, v[{o}:{o+3}], s[14:15] offset:{off} {st}")
    a("L_end:")
    a("    s_endpgm")
    a('.section .rodata,"a"')
    a(".p2align 6")
    a(f".amdhsa_kernel {NAME}")
    a(f"  .amdhsa_next_free_vgpr {nv}")
    a(f"  .amdhsa_next_free_sgpr 32")
    a(f"  .amdhsa_accum_offset {(nv+3)//4*4}")
    a("  .amdhsa_group_segment_fixed_size 0")
    a("  .amdhsa_kernarg_size 64")
    a("  .amdhsa_user_sgpr_count 2")
    a("  .amdhsa_user_sgpr_kernarg_segment_ptr 1")
    a("  .amdhsa_system_sgpr_workgroup_id_x 1")
    a("  .amdhsa_float_denorm_mode_32 3")
    a(".end_amdhsa_kernel")
    return "\n".join(a.L) + "\n"
```

```python
from gen12 import gen
s=gen(4,amap='s8x',order='xxff',upfront=True)
L=s.split("\n")
out=[]
def c(t): out.append("    ; "+t)
seen=set()
for i,ln in enumerate(L):
    t=ln.strip()
    if t.startswith(".amdgcn_target"):
        out += [
"; out = LayerNorm(alpha*x + f) * g + b over rows of 512 bf16 (1 KiB).  fp32 maths, two-pass variance.",
"; 2048 workgroups x 4 waves, 2 rows per wave, one 16-byte load per lane and row: the whole problem is resident at once.",
"; Memory interleaves between the two I/O dies every 8 KiB, so each wave takes one row from an even and one from an",
"; odd 8 KiB block (odd waves in the opposite order): every CU keeps both directions of the die-to-die link loaded.",
"; Loads are issued at high priority, stores after them: a write-through store must not hold up loads queued behind it."]
    if t=="s_load_dwordx8 s[4:11], s[0:1], 0": ln+="      ; x, f, g, b"
    if t=="s_load_dwordx4 s[12:15], s[0:1], 32": ln+="    ; alpha, out"
    if t=="s_cbranch_scc1 L_end": ln+="                   ; workgroups past the data"
    if t=="s_lshl_b32 s3, s2, 13": c("byte offset: (wg>>1)*16 KiB + (wg&1)*4 KiB + tid*16 + (wave&1)*8 KiB; second row = the same in the other 8 KiB block")
    if t=="v_and_b32 v2, 63, v0": c("v2 = lane*16: this lane's 8 columns of g and b")
    if t.startswith("global_load_dwordx4 v[4:7]"): c("row A: x v[4:7], f v[8:11]; row B: x v[12:15], f v[16:19]; g v[20:23], b v[24:27]")
    if t=="s_mov_b32 s22, 0x3b000000": ln+="              ; 1/512"
    if t=="v_mov_b32 v3, 0x3727c5ac": ln+="               ; eps = 1e-5"
    if t=="s_lshl_b32 s16, s16, 16": ln+="                ; alpha as fp32"
    if t=="s_waitcnt vmcnt(2)": c("g -> v[28:35], b -> v[36:43] (fp32)")
    if t=="s_waitcnt vmcnt(1)": c("row A: h = alpha*x + f in v[4:11], lane sum in v2")
    if t=="s_waitcnt vmcnt(0)": c("row B: h in v[12:19], lane sum in v0")
    if t=="v_permlane32_swap_b32 v2, v0":
        c("joint reduction: lanes 0-31 carry row A, lanes 32-63 row B; totals end in lanes 31 and 63" if "r1" not in seen else "same reduction for the sums of squares; d*g fills the DPP wait states")
        seen.add("r1")
    if t=="v_mul_f32 v2, s22, v2": ln+="                  ; means"
    if t.startswith("v_pk_add_f32 v[4:5], v[4:5], s[24:25]"): c("d = h - mean, lane sums of d*d")
    if t=="v_fma_f32 v2, v2, s22, v3": ln+="              ; var + eps"
    if t.startswith("v_pk_fma_f32 v[4:5], v[4:5], s[28:29]"): c("out = (d*g)*rstd + b")
    out.append(ln)
open("../cdna_kernels/standalone__deepnorm__sampling.s","w").write("\n".join(out))
```

```python
from gen12 import gen
from mk import build
fs=["v/v12_s8x_xxff.s"]
def w(n,s):
    p=f"v/{n}.s"; open(p,"w").write(s); fs.append(p)
w("v12u_w4",gen(4,amap='s8x',order='xxff',upfront=True))
w("v12u_w8",gen(8,amap='s8x',order='xxff',upfront=True))
w("v12u_w2",gen(2,amap='s8x',order='xxff',upfront=True))
w("v12u_w1",gen(1,amap='s8x',order='xxff',upfront=True))
w("v12u_w4_s1nt",gen(4,amap='s8x',order='xxff',upfront=True,ld="sc1 nt"))
w("v12u_w4_sts1",gen(4,amap='s8x',order='xxff',upfront=True,st="sc1"))
build(fs)
```

```python
import re
from gen1 import NAME
def wrap(s, W, nw, par=True, mult=5):
    nv = int(re.search(r"next_free_vgpr (\d+)", s).group(1)); sp = max(nv, 24); nv2 = sp + 1
    L = s.split("\n"); out = []
    for ln in L:
        if ln.startswith(NAME + ":"):
            out += [ln, "    s_memrealtime s[68:69]", "    s_load_dwordx2 s[70:71], s[0:1], 56", "    v_mov_b32 vSPARE, v0"]
            continue
        if ln.startswith("L_end:"):
            lw = {1: 0, 2: 1, 4: 2, 8: 3, 16: 4}[W]
            out += ["    s_waitcnt vmcnt(0)",
                    "    s_memrealtime s[72:73]",
                    "    v_lshrrev_b32 v2, 6, vSPARE",
                    f"    s_lshl_b32 s3, s2, {lw}",
                    "    v_add_u32 v2, s3, v2",
                    "    v_lshlrev_b32 v2, 3, v2",
                    "    v_and_b32 v3, 63, vSPARE",
                    "    v_cmp_eq_u32 vcc, 0, v3",
                    "    s_waitcnt lgkmcnt(0)",
                    "    v_mov_b32 v4, s68", "    v_mov_b32 v5, s72",
                    "    s_and_saveexec_b64 s[54:55], vcc",
                    "    global_store_dwordx2 v2, v[4:5], s[70:71]",
                    "    s_mov_b64 exec, s[54:55]",
                    "    buffer_wbl2 sc1" if False else "",
                    "    s_branch L_rep",
                    "L_end:", "    s_endpgm", "L_rep:",
                    ]
            out += ["L_w0:", "    s_sleep 64", "    s_memrealtime s[58:59]", "    s_waitcnt lgkmcnt(0)", "    s_sub_u32 s58, s58, s68",
                    "    s_cmp_lt_u32 s58, 2000", "    s_cbranch_scc1 L_w0",
                    "    s_and_saveexec_b64 s[54:55], vcc",
                    "    global_store_dwordx2 v2, v[4:5], s[70:71] sc0 sc1",
                    "    s_mov_b64 exec, s[54:55]",
                    "    v_readfirstlane_b32 s3, vSPARE", "    s_nop 3", "    s_cmp_lg_u32 s3, 0", "    s_cbranch_scc1 L_end",
                    "    s_cmp_lg_u32 s2, 1", "    s_cbranch_scc1 L_end",
                    "L_spin1:", "    s_memrealtime s[58:59]", "    s_waitcnt lgkmcnt(0)", "    s_sub_u32 s58, s58, s68",
                    "    s_cmp_lt_u32 s58, 4000", "    s_cbranch_scc1 L_spin1",
                    "    v_lshlrev_b32 v2, 3, vSPARE", "    v_mov_b32 v20, -1", "    v_mov_b32 v21, 0", f"    s_mov_b32 s62, {nw//64}", "    s_sub_u32 s63, s68, 100000",
                    "L_rd:", "    global_load_dwordx2 v[4:5], v2, s[70:71] sc0 sc1", "    s_waitcnt vmcnt(0)",
                    "    v_subrev_u32 v4, s63, v4", "    v_subrev_u32 v5, s63, v5", "    v_min_u32 v20, v20, v4", "    v_max_u32 v21, v21, v5",
                    "    v_add_u32 v2, 512, v2", "    s_sub_u32 s62, s62, 1", "    s_cmp_lg_u32 s62, 0", "    s_cbranch_scc1 L_rd",
                    "    s_mov_b32 s64, -1", "    s_mov_b32 s65, 0", "    s_mov_b32 s62, 0",
                    "L_red:", "    s_nop 4", "    v_readlane_b32 s66, v20, s62", "    v_readlane_b32 s67, v21, s62", "    s_nop 4",
                    "    s_min_u32 s64, s64, s66", "    s_max_u32 s65, s65, s67", "    s_add_u32 s62, s62, 1", "    s_cmp_lt_u32 s62, 64", "    s_cbranch_scc1 L_red",
                    "    s_sub_u32 s65, s65, s64", "    s_min_u32 s65, s65, 1500", f"    s_mul_i32 s65, s65, {mult}"]
            for bi, (base, wgt) in enumerate([("s[4:5]", 8000), ("s[6:7]", 16000)] if par else []):
                out += ["    s_mov_b32 s66, 0", "    s_mov_b32 s67, 0", "    s_mov_b32 s62, 0",
                        f"L_p{bi}:",
                        "    s_lshl_b32 s63, s62, 16", "    s_add_u32 s63, s63, 16384", "    v_mov_b32 v2, s63",
                        "    s_waitcnt vmcnt(0) lgkmcnt(0)", "    s_memtime s[56:57]", "    s_waitcnt lgkmcnt(0)",
                        f"    global_load_dword v4, v2, {base}", "    s_waitcnt vmcnt(0)", "    s_memtime s[58:59]", "    s_waitcnt lgkmcnt(0)",
                        "    s_sub_u32 s58, s58, s56", "    s_add_u32 s66, s66, s58", "    v_add_u32 v2, 8192, v2",
                        "    s_memtime s[56:57]", "    s_waitcnt lgkmcnt(0)",
                        f"    global_load_dword v4, v2, {base}", "    s_waitcnt vmcnt(0)", "    s_memtime s[58:59]", "    s_waitcnt lgkmcnt(0)",
                        "    s_sub_u32 s58, s58, s56", "    s_add_u32 s67, s67, s58",
                        "    s_add_u32 s62, s62, 1", "    s_cmp_lt_u32 s62, 16", f"    s_cbranch_scc1 L_p{bi}",
                        "    s_cmp_lt_u32 s66, s67", f"    s_cselect_b32 s63, 0, {wgt}", "    s_add_u32 s65, s65, s63"]
            out += ["    s_add_u32 s65, s65, 20000",
                    "L_spin2:", "    s_memrealtime s[58:59]", "    s_waitcnt lgkmcnt(0)", "    s_sub_u32 s58, s58, s68",
                    "    s_cmp_lt_u32 s58, s65", "    s_cbranch_scc1 L_spin2", "    s_endpgm"]
            continue
        if ln.strip() == "s_endpgm": continue
        ln = re.sub(r"next_free_sgpr \d+", "next_free_sgpr 74", ln)
        ln = re.sub(r"next_free_vgpr \d+", f"next_free_vgpr {nv2}", ln)
        ln = re.sub(r"accum_offset \d+", f"accum_offset {(nv2+3)//4*4}", ln)
        out.append(ln)
    return ("\n".join(x for x in out if x != "") + "\n").replace("vSPARE", f"v{sp}")
def decode(t, base=211.3):
    t -= base; p = int(t // 80); return p & 1, p >> 1 & 1, (t - 80 * p) / 5
```

```python
from hwrap import wrap
from mk import build
import sys
fs=[]
for n in sys.argv[1:]:
    s=open(f"v/{n}.s").read()
    import re
    g,b=re.search(r"@launch grid=\((\d+),1,1\) block=\((\d+)",s).groups()
    W=int(b)//64; nw=int(g)*W
    p=f"v/hn_{n}.s"; open(p,"w").write(wrap(s,W,nw,par=False,mult=10)); fs.append(p)
build(fs)
print([f"work/{f}" for f in fs])
```

```python
from gen1 import HEADER, NAME
from gen2 import DPP16, Emit

def gen(T=14, unit=1, G=4, prio=3, sl=2, ld="nt", st="sc0 sc1", order="a", initbar=True, align=True, Tmap=None, Wmap=None):
    a = Emit()
    a(HEADER + f"; @launch grid=(256,1,1) block=(1024,1,1) lds=64")
    a('.amdgcn_target "amdgcn-amd-amdhsa--gfx950"')
    a(".text")
    a(f".globl {NAME}")
    if align: a(".p2align 13")
    a(".p2align 8")
    a(f".type {NAME},@function")
    a(f"{NAME}:")
    a("    s_load_dwordx8 s[4:11], s[0:1], 0")
    a("    s_load_dwordx4 s[12:15], s[0:1], 32")
    a("    s_cmpk_ge_u32 s2, 256")
    a("    s_cbranch_scc1 L_end")
    if prio is not None: a(f"    s_setprio {prio}")
    Z, ONE, VB = 7, 80, 4
    if Wmap: a("    v_readfirstlane_b32 s23, v0")
    a(f"    v_mov_b32 v{Z}, 0")
    a(f"    ds_write_b32 v{Z}, v{Z}")
    a("    s_lshl_b32 s3, s2, 14")
    a("    s_bitset1_b32 s3, 12")
    a("    v_lshrrev_b32 v3, 8, v0")
    a("    v_and_b32 v1, 255, v0")
    a("    v_lshl_add_u32 v1, v1, 4, s3")
    a("    v_lshl_add_u32 v1, v3, 22, v1")
    a("    v_bfe_u32 v3, v0, 6, 1")
    a("    v_lshl_add_u32 v1, v3, 13, v1")
    a(f"    v_xor_b32 v{VB}, 0x2000, v1")
    a("    v_and_b32 v2, 63, v0")
    a("    v_lshlrev_b32 v2, 4, v2")
    a("    s_waitcnt lgkmcnt(0)")
    if initbar is True: a("    s_barrier")
    RAW = 8
    GP = RAW + 32; BP = GP + 4; GU = BP + 4; BU = GU + 8; T0 = BU + 8
    nv = 81
    EPS = 3
    ACC = [2, 0, 5, 6]
    adr = [(1, -4096), (VB, -4096), (1, 0), (VB, 0)]
    issued = []
    def ld1(kind, r):
        reg = RAW + 8 * r + (4 if kind == "f" else 0)
        va, off = adr[r]
        a(f"    global_load_dwordx4 v[{reg}:{reg+3}], v{va}, {'s[4:5]' if kind=='x' else 's[6:7]'} offset:{off} {ld}")
        issued.append((kind, r))
    def gbp():
        a(f"    global_load_dwordx4 v[{GP}:{GP+3}], v2, s[8:9]")
        a(f"    global_load_dwordx4 v[{BP}:{BP+3}], v2, s[10:11]")
        a("    s_load_dword s16, s[12:13], 0")
        issued.extend([("g", 0), ("b", 0)])
    ld1("x", 0); ld1("x", 1)
    if initbar == "after2": a("    s_barrier")
    if order == "a":
        gbp(); ld1("f", 0); ld1("f", 1); ld1("x", 2); ld1("x", 3); ld1("f", 2); ld1("f", 3)
    elif order == "b":
        ld1("f", 0); ld1("f", 1); gbp(); ld1("x", 2); ld1("x", 3); ld1("f", 2); ld1("f", 3)
    elif order == "c":
        ld1("x", 2); ld1("x", 3); gbp(); ld1("f", 0); ld1("f", 1); ld1("f", 2); ld1("f", 3)
    if prio is not None: a("    s_setprio 0")
    a("    s_mov_b32 s20, 0xffff0000")
    a("    s_mov_b32 s22, 0x3b000000")
    a(f"    v_mov_b32 v{EPS}, 0x3727c5ac")
    a(f"    v_mov_b32 v{ONE}, 1")
    if Tmap:
        base = min(Tmap); c = sum((t - base) << (4 * i) for i, t in enumerate(Tmap))
        a("    s_and_b32 s23, s2, 7")
        a("    s_lshl_b32 s23, s23, 2")
        a(f"    s_lshr_b32 s23, {c:#x}, s23")
        a("    s_and_b32 s23, s23, 15")
        a(f"    s_add_u32 s23, s23, {base}")
    if Wmap:
        base = min(Wmap); c = sum((t - base) << (4 * i) for i, t in enumerate(Wmap))
        a("    s_lshr_b32 s23, s23, 8")
        a("    s_lshl_b32 s23, s23, 2")
        a(f"    s_lshr_b32 s23, {c:#x}, s23")
        a("    s_and_b32 s23, s23, 15")
        a(f"    s_add_u32 s23, s23, {base}")
    done = [0]
    def wait_for(tag):
        idx = max(i for i, t in enumerate(issued) if t == tag)
        if idx + 1 > done[0]:
            a(f"    s_waitcnt vmcnt({len(issued)-1-idx})")
            done[0] = idx + 1
    def count():
        a("    s_mov_b64 exec, 1")
        a(f"    ds_add_u32 v{Z}, v{ONE}")
        a("    s_mov_b64 exec, -1")
    def hrow(x, f, acc, t):
        a(f"    v_lshlrev_b32 v{t}, 16, v{x}")
        a(f"    v_and_b32 v{t+1}, s20, v{x}")
        a(f"    v_lshlrev_b32 v{t+2}, 16, v{x+1}")
        a(f"    v_and_b32 v{t+3}, s20, v{x+1}")
        a(f"    v_lshlrev_b32 v{x}, 16, v{f}")
        a(f"    v_and_b32 v{x+1}, s20, v{f}")
        a(f"    v_lshlrev_b32 v{t+4}, 16, v{x+2}")
        a(f"    v_and_b32 v{t+5}, s20, v{x+2}")
        a(f"    v_lshlrev_b32 v{t+6}, 16, v{x+3}")
        a(f"    v_and_b32 v{t+7}, s20, v{x+3}")
        a(f"    v_lshlrev_b32 v{x+2}, 16, v{f+1}")
        a(f"    v_and_b32 v{x+3}, s20, v{f+1}")
        a(f"    v_pk_fma_f32 v[{x}:{x+1}], v[{t}:{t+1}], s[16:17], v[{x}:{x+1}] op_sel_hi:[1,0,1]")
        a(f"    v_lshlrev_b32 v{f}, 16, v{f+2}")
        a(f"    v_and_b32 v{f+1}, s20, v{f+2}")
        a(f"    v_pk_fma_f32 v[{x+2}:{x+3}], v[{t+2}:{t+3}], s[16:17], v[{x+2}:{x+3}] op_sel_hi:[1,0,1]")
        a(f"    v_lshlrev_b32 v{f+2}, 16, v{f+3}")
        a(f"    v_and_b32 v{f+3}, s20, v{f+3}")
        a(f"    v_pk_fma_f32 v[{f}:{f+1}], v[{t+4}:{t+5}], s[16:17], v[{f}:{f+1}] op_sel_hi:[1,0,1]")
        a(f"    v_pk_add_f32 v[{t}:{t+1}], v[{x}:{x+1}], v[{x+2}:{x+3}]")
        a(f"    v_pk_fma_f32 v[{f+2}:{f+3}], v[{t+6}:{t+7}], s[16:17], v[{f+2}:{f+3}] op_sel_hi:[1,0,1]")
        a(f"    v_pk_add_f32 v[{t}:{t+1}], v[{t}:{t+1}], v[{f}:{f+1}]")
        a(f"    v_pk_add_f32 v[{t}:{t+1}], v[{t}:{t+1}], v[{f+2}:{f+3}]")
        a(f"    v_add_f32 v{acc}, v{t}, v{t+1}")
    def red(regs, fillers):
        fillers = list(fillers)
        def gap(n=2):
            k = 0
            while k < n and fillers:
                a(fillers.pop(0)); k += 1
            if n - k == 2: a("    s_nop 1")
            elif n - k == 1: a("    s_nop 0")
        if len(regs) == 2:
            A, B = regs
            gap(); a(f"    v_permlane32_swap_b32 v{A}, v{B}"); a(f"    v_add_f32 v{A}, v{A}, v{B}")
            for d in DPP16 + ["row_bcast:15 row_mask:0xa bank_mask:0xf"]:
                gap(); a(f"    v_add_f32_dpp v{A}, v{A}, v{A} {d}")
            lanes = [31, 63]
        else:
            A, B, C, D = regs
            gap(1); a(f"    v_permlane32_swap_b32 v{A}, v{B}"); a(f"    v_permlane32_swap_b32 v{C}, v{D}")
            a(f"    v_add_f32 v{A}, v{A}, v{B}"); a(f"    v_add_f32 v{C}, v{C}, v{D}")
            gap(); a(f"    v_permlane16_swap_b32 v{A}, v{C}"); a(f"    v_add_f32 v{A}, v{A}, v{C}")
            for d in DPP16:
                gap(); a(f"    v_add_f32_dpp v{A}, v{A}, v{A} {d}")
            lanes = [0, 32, 16, 48]
        for fl in fillers: a(fl)
        return regs[0], lanes
    def unp():
        wait_for(("b", 0))
        for j in range(4):
            a(f"    v_lshlrev_b32 v{GU+2*j}, 16, v{GP+j}")
            a(f"    v_and_b32 v{GU+2*j+1}, s20, v{GP+j}")
            a(f"    v_lshlrev_b32 v{BU+2*j}, 16, v{BP+j}")
            a(f"    v_and_b32 v{BU+2*j+1}, s20, v{BP+j}")
    a("    s_waitcnt lgkmcnt(0)")
    a("    s_lshl_b32 s16, s16, 16")
    gb_before = issued.index(("b", 0)) < issued.index(("f", 0))
    gbd = False
    if gb_before: unp(); gbd = True
    outs = {}
    for g0 in range(0, 4, G):
        rows = list(range(g0, g0 + G)); acc = ACC[:G]
        for k, r in enumerate(rows):
            wait_for(("f", r))
            if r == 3 or (unit == 2 and r == 1): count()
            hrow(RAW + 8 * r, RAW + 8 * r + 4, acc[k], T0)
            if r == 1 and not gbd: unp(); gbd = True
        A, lanes = red(acc, [])
        a(f"    v_mul_f32 v{A}, s22, v{A}")
        a("    s_nop 0")
        for k in range(G): a(f"    v_readlane_b32 s{24+2*k}, v{A}, {lanes[k]}")
        if G == 2: a("    s_nop 0")
        for k, r in enumerate(rows):
            h = RAW + 8 * r; t = T0 + 4 * (k & 1); s = 24 + 2 * k
            for j in range(4):
                a(f"    v_pk_add_f32 v[{h+2*j}:{h+2*j+1}], v[{h+2*j}:{h+2*j+1}], s[{s}:{s+1}] op_sel_hi:[1,0] neg_lo:[0,1] neg_hi:[0,1]")
            a(f"    v_pk_mul_f32 v[{t}:{t+1}], v[{h}:{h+1}], v[{h}:{h+1}]")
            a(f"    v_pk_mul_f32 v[{t+2}:{t+3}], v[{h+2}:{h+3}], v[{h+2}:{h+3}]")
            a(f"    v_pk_fma_f32 v[{t}:{t+1}], v[{h+4}:{h+5}], v[{h+4}:{h+5}], v[{t}:{t+1}]")
            a(f"    v_pk_fma_f32 v[{t+2}:{t+3}], v[{h+6}:{h+7}], v[{h+6}:{h+7}], v[{t+2}:{t+3}]")
            a(f"    v_pk_add_f32 v[{t}:{t+1}], v[{t}:{t+1}], v[{t+2}:{t+3}]")
            a(f"    v_add_f32 v{acc[k]}, v{t}, v{t+1}")
        dg = [f"    v_pk_mul_f32 v[{RAW+8*r+2*j}:{RAW+8*r+2*j+1}], v[{RAW+8*r+2*j}:{RAW+8*r+2*j+1}], v[{GU+2*j}:{GU+2*j+1}]" for r in rows for j in range(4)]
        A, lanes = red(acc, dg)
        a(f"    v_fma_f32 v{A}, v{A}, s22, v{EPS}")
        a(f"    v_rsq_f32 v{A}, v{A}")
        a("    s_nop 0")
        for k in range(G): a(f"    v_readlane_b32 s{32+2*k}, v{A}, {lanes[k]}")
        if G == 2: a("    s_nop 0")
        for k, r in enumerate(rows):
            h = RAW + 8 * r; s = 32 + 2 * k
            for j in range(4):
                a(f"    v_pk_fma_f32 v[{h+2*j}:{h+2*j+1}], v[{h+2*j}:{h+2*j+1}], s[{s}:{s+1}], v[{BU+2*j}:{BU+2*j+1}] op_sel_hi:[1,0,1]")
            for j in range(4):
                a(f"    v_cvt_pk_bf16_f32 v{h+j}, v{h+2*j}, v{h+2*j+1}")
    a("L_pl:")
    a(f"    ds_read_b32 v{ONE}, v{Z}")
    a("    s_waitcnt lgkmcnt(0)")
    a(f"    v_readfirstlane_b32 s21, v{ONE}")
    a(f"    s_cmp_ge_u32 s21, {'s23' if (Tmap or Wmap) else T}")
    a("    s_cbranch_scc1 L_st")
    if sl: a(f"    s_sleep {sl}")
    a("    s_branch L_pl")
    a("L_st:")
    for r in range(4):
        va, off = adr[r]; h = RAW + 8 * r
        a(f"    global_store_dwordx4 v{va}, v[{h}:{h+3}], s[14:15] offset:{off} {st}")
    a("L_end:")
    a("    s_endpgm")
    nv = max(T0 + 8, ONE + 1)
    a('.section .rodata,"a"')
    a(".p2align 6")
    a(f".amdhsa_kernel {NAME}")
    a(f"  .amdhsa_next_free_vgpr {nv}")
    a(f"  .amdhsa_next_free_sgpr 40")
    a(f"  .amdhsa_accum_offset {(nv+3)//4*4}")
    a("  .amdhsa_group_segment_fixed_size 0")
    a("  .amdhsa_kernarg_size 64")
    a("  .amdhsa_user_sgpr_count 2")
    a("  .amdhsa_user_sgpr_kernarg_segment_ptr 1")
    a("  .amdhsa_system_sgpr_workgroup_id_x 1")
    a("  .amdhsa_float_denorm_mode_32 3")
    a(".end_amdhsa_kernel")
    return "\n".join(a.L) + "\n"
```

```python
from gen18 import gen
from mkc import multi
V={"ap_cur":None,"d_T14":None,
 "d_T14_sl0":dict(T=14,sl=0),
 "d_T14_ob":dict(T=14,order="b"),
 "d_T14_s1nt":dict(T=14,ld="sc1 nt"),
 "d_T14_sts1":dict(T=14,st="sc1"),
 "d_T14_stnt":dict(T=14,st="nt"),
}
for k,v in V.items():
    if v is not None: open(f"v/{k}.s","w").write(gen(**v))
multi(list(V),n=2)
```

```python
from gen1 import HEADER, NAME
from gen2 import DPP16, Emit

def gen(T=14, unit=1, G=4, prio=3, sl=2, ld="nt", st="sc0 sc1", order="a", initbar=True, align=True, Tmap=None, Wmap=None, T2=None):
    a = Emit()
    a(HEADER + f"; @launch grid=(256,1,1) block=(1024,1,1) lds=64")
    a('.amdgcn_target "amdgcn-amd-amdhsa--gfx950"')
    a(".text")
    a(f".globl {NAME}")
    if align: a(".p2align 13")
    a(".p2align 8")
    a(f".type {NAME},@function")
    a(f"{NAME}:")
    a("    s_load_dwordx8 s[4:11], s[0:1], 0")
    a("    s_load_dwordx4 s[12:15], s[0:1], 32")
    a("    s_cmpk_ge_u32 s2, 256")
    a("    s_cbranch_scc1 L_end")
    if prio is not None: a(f"    s_setprio {prio}")
    Z, ONE, VB = 7, 80, 4
    if Wmap: a("    v_readfirstlane_b32 s23, v0")
    a(f"    v_mov_b32 v{Z}, 0")
    a(f"    ds_write_b32 v{Z}, v{Z}")
    a("    s_lshl_b32 s3, s2, 14")
    a("    s_bitset1_b32 s3, 12")
    a("    v_lshrrev_b32 v3, 8, v0")
    a("    v_and_b32 v1, 255, v0")
    a("    v_lshl_add_u32 v1, v1, 4, s3")
    a("    v_lshl_add_u32 v1, v3, 22, v1")
    a("    v_bfe_u32 v3, v0, 6, 1")
    a("    v_lshl_add_u32 v1, v3, 13, v1")
    a(f"    v_xor_b32 v{VB}, 0x2000, v1")
    a("    v_and_b32 v2, 63, v0")
    a("    v_lshlrev_b32 v2, 4, v2")
    a("    s_waitcnt lgkmcnt(0)")
    if initbar is True: a("    s_barrier")
    RAW = 8
    GP = RAW + 32; BP = GP + 4; GU = BP + 4; BU = GU + 8; T0 = BU + 8
    nv = 81
    EPS = 3
    ACC = [2, 0, 5, 6]
    adr = [(1, -4096), (VB, -4096), (1, 0), (VB, 0)]
    issued = []
    def ld1(kind, r):
        reg = RAW + 8 * r + (4 if kind == "f" else 0)
        va, off = adr[r]
        a(f"    global_load_dwordx4 v[{reg}:{reg+3}], v{va}, {'s[4:5]' if kind=='x' else 's[6:7]'} offset:{off} {ld}")
        issued.append((kind, r))
    def gbp():
        a(f"    global_load_dwordx4 v[{GP}:{GP+3}], v2, s[8:9]")
        a(f"    global_load_dwordx4 v[{BP}:{BP+3}], v2, s[10:11]")
        a("    s_load_dword s16, s[12:13], 0")
        issued.extend([("g", 0), ("b", 0)])
    if order == "g": gbp()
    ld1("x", 0); ld1("x", 1)
    if initbar == "after2": a("    s_barrier")
    if order == "a":
        gbp(); ld1("f", 0); ld1("f", 1); ld1("x", 2); ld1("x", 3); ld1("f", 2); ld1("f", 3)
    elif order == "b":
        ld1("f", 0); ld1("f", 1); gbp(); ld1("x", 2); ld1("x", 3); ld1("f", 2); ld1("f", 3)
    elif order == "g":
        ld1("f", 0); ld1("f", 1); ld1("x", 2); ld1("x", 3); ld1("f", 2); ld1("f", 3)
    elif order == "r":
        gbp(); ld1("f", 1); ld1("f", 0); ld1("x", 3); ld1("x", 2); ld1("f", 2); ld1("f", 3)
    elif order == "c":
        ld1("x", 2); ld1("x", 3); gbp(); ld1("f", 0); ld1("f", 1); ld1("f", 2); ld1("f", 3)
    if prio is not None: a("    s_setprio 0")
    a("    s_mov_b32 s20, 0xffff0000")
    a("    s_mov_b32 s22, 0x3b000000")
    a(f"    v_mov_b32 v{EPS}, 0x3727c5ac")
    a(f"    v_mov_b32 v{ONE}, 1")
    if Tmap:
        base = min(Tmap); c = sum((t - base) << (4 * i) for i, t in enumerate(Tmap))
        a("    s_and_b32 s23, s2, 7")
        a("    s_lshl_b32 s23, s23, 2")
        a(f"    s_lshr_b32 s23, {c:#x}, s23")
        a("    s_and_b32 s23, s23, 15")
        a(f"    s_add_u32 s23, s23, {base}")
    if Wmap:
        base = min(Wmap); c = sum((t - base) << (4 * i) for i, t in enumerate(Wmap))
        a("    s_lshr_b32 s23, s23, 8")
        a("    s_lshl_b32 s23, s23, 2")
        a(f"    s_lshr_b32 s23, {c:#x}, s23")
        a("    s_and_b32 s23, s23, 15")
        a(f"    s_add_u32 s23, s23, {base}")
    done = [0]
    def wait_for(tag):
        idx = max(i for i, t in enumerate(issued) if t == tag)
        if idx + 1 > done[0]:
            a(f"    s_waitcnt vmcnt({len(issued)-1-idx})")
            done[0] = idx + 1
    def count():
        a("    s_mov_b64 exec, 1")
        a(f"    ds_add_u32 v{Z}, v{ONE}")
        a("    s_mov_b64 exec, -1")
    def hrow(x, f, acc, t):
        a(f"    v_lshlrev_b32 v{t}, 16, v{x}")
        a(f"    v_and_b32 v{t+1}, s20, v{x}")
        a(f"    v_lshlrev_b32 v{t+2}, 16, v{x+1}")
        a(f"    v_and_b32 v{t+3}, s20, v{x+1}")
        a(f"    v_lshlrev_b32 v{x}, 16, v{f}")
        a(f"    v_and_b32 v{x+1}, s20, v{f}")
        a(f"    v_lshlrev_b32 v{t+4}, 16, v{x+2}")
        a(f"    v_and_b32 v{t+5}, s20, v{x+2}")
        a(f"    v_lshlrev_b32 v{t+6}, 16, v{x+3}")
        a(f"    v_and_b32 v{t+7}, s20, v{x+3}")
        a(f"    v_lshlrev_b32 v{x+2}, 16, v{f+1}")
        a(f"    v_and_b32 v{x+3}, s20, v{f+1}")
        a(f"    v_pk_fma_f32 v[{x}:{x+1}], v[{t}:{t+1}], s[16:17], v[{x}:{x+1}] op_sel_hi:[1,0,1]")
        a(f"    v_lshlrev_b32 v{f}, 16, v{f+2}")
        a(f"    v_and_b32 v{f+1}, s20, v{f+2}")
        a(f"    v_pk_fma_f32 v[{x+2}:{x+3}], v[{t+2}:{t+3}], s[16:17], v[{x+2}:{x+3}] op_sel_hi:[1,0,1]")
        a(f"    v_lshlrev_b32 v{f+2}, 16, v{f+3}")
        a(f"    v_and_b32 v{f+3}, s20, v{f+3}")
        a(f"    v_pk_fma_f32 v[{f}:{f+1}], v[{t+4}:{t+5}], s[16:17], v[{f}:{f+1}] op_sel_hi:[1,0,1]")
        a(f"    v_pk_add_f32 v[{t}:{t+1}], v[{x}:{x+1}], v[{x+2}:{x+3}]")
        a(f"    v_pk_fma_f32 v[{f+2}:{f+3}], v[{t+6}:{t+7}], s[16:17], v[{f+2}:{f+3}] op_sel_hi:[1,0,1]")
        a(f"    v_pk_add_f32 v[{t}:{t+1}], v[{t}:{t+1}], v[{f}:{f+1}]")
        a(f"    v_pk_add_f32 v[{t}:{t+1}], v[{t}:{t+1}], v[{f+2}:{f+3}]")
        a(f"    v_add_f32 v{acc}, v{t}, v{t+1}")
    def red(regs, fillers):
        fillers = list(fillers)
        def gap(n=2):
            k = 0
            while k < n and fillers:
                a(fillers.pop(0)); k += 1
            if n - k == 2: a("    s_nop 1")
            elif n - k == 1: a("    s_nop 0")
        if len(regs) == 2:
            A, B = regs
            gap(); a(f"    v_permlane32_swap_b32 v{A}, v{B}"); a(f"    v_add_f32 v{A}, v{A}, v{B}")
            for d in DPP16 + ["row_bcast:15 row_mask:0xa bank_mask:0xf"]:
                gap(); a(f"    v_add_f32_dpp v{A}, v{A}, v{A} {d}")
            lanes = [31, 63]
        else:
            A, B, C, D = regs
            gap(1); a(f"    v_permlane32_swap_b32 v{A}, v{B}"); a(f"    v_permlane32_swap_b32 v{C}, v{D}")
            a(f"    v_add_f32 v{A}, v{A}, v{B}"); a(f"    v_add_f32 v{C}, v{C}, v{D}")
            gap(); a(f"    v_permlane16_swap_b32 v{A}, v{C}"); a(f"    v_add_f32 v{A}, v{A}, v{C}")
            for d in DPP16:
                gap(); a(f"    v_add_f32_dpp v{A}, v{A}, v{A} {d}")
            lanes = [0, 32, 16, 48]
        for fl in fillers: a(fl)
        return regs[0], lanes
    def unp():
        wait_for(("b", 0))
        for j in range(4):
            a(f"    v_lshlrev_b32 v{GU+2*j}, 16, v{GP+j}")
            a(f"    v_and_b32 v{GU+2*j+1}, s20, v{GP+j}")
            a(f"    v_lshlrev_b32 v{BU+2*j}, 16, v{BP+j}")
            a(f"    v_and_b32 v{BU+2*j+1}, s20, v{BP+j}")
    a("    s_waitcnt lgkmcnt(0)")
    a("    s_lshl_b32 s16, s16, 16")
    gb_before = issued.index(("b", 0)) < issued.index(("f", 0))
    gbd = False
    if gb_before: unp(); gbd = True
    outs = {}
    for g0 in range(0, 4, G):
        rows = list(range(g0, g0 + G)); acc = ACC[:G]
        for k, r in enumerate(rows):
            wait_for(("f", r))
            if r == 3 or (unit == 2 and r == 1): count()
            hrow(RAW + 8 * r, RAW + 8 * r + 4, acc[k], T0)
            if r == 1 and not gbd: unp(); gbd = True
        A, lanes = red(acc, [])
        a(f"    v_mul_f32 v{A}, s22, v{A}")
        a("    s_nop 0")
        for k in range(G): a(f"    v_readlane_b32 s{24+2*k}, v{A}, {lanes[k]}")
        if G == 2: a("    s_nop 0")
        for k, r in enumerate(rows):
            h = RAW + 8 * r; t = T0 + 4 * (k & 1); s = 24 + 2 * k
            for j in range(4):
                a(f"    v_pk_add_f32 v[{h+2*j}:{h+2*j+1}], v[{h+2*j}:{h+2*j+1}], s[{s}:{s+1}] op_sel_hi:[1,0] neg_lo:[0,1] neg_hi:[0,1]")
            a(f"    v_pk_mul_f32 v[{t}:{t+1}], v[{h}:{h+1}], v[{h}:{h+1}]")
            a(f"    v_pk_mul_f32 v[{t+2}:{t+3}], v[{h+2}:{h+3}], v[{h+2}:{h+3}]")
            a(f"    v_pk_fma_f32 v[{t}:{t+1}], v[{h+4}:{h+5}], v[{h+4}:{h+5}], v[{t}:{t+1}]")
            a(f"    v_pk_fma_f32 v[{t+2}:{t+3}], v[{h+6}:{h+7}], v[{h+6}:{h+7}], v[{t+2}:{t+3}]")
            a(f"    v_pk_add_f32 v[{t}:{t+1}], v[{t}:{t+1}], v[{t+2}:{t+3}]")
            a(f"    v_add_f32 v{acc[k]}, v{t}, v{t+1}")
        dg = [f"    v_pk_mul_f32 v[{RAW+8*r+2*j}:{RAW+8*r+2*j+1}], v[{RAW+8*r+2*j}:{RAW+8*r+2*j+1}], v[{GU+2*j}:{GU+2*j+1}]" for r in rows for j in range(4)]
        A, lanes = red(acc, dg)
        a(f"    v_fma_f32 v{A}, v{A}, s22, v{EPS}")
        a(f"    v_rsq_f32 v{A}, v{A}")
        a("    s_nop 0")
        for k in range(G): a(f"    v_readlane_b32 s{32+2*k}, v{A}, {lanes[k]}")
        if G == 2: a("    s_nop 0")
        for k, r in enumerate(rows):
            h = RAW + 8 * r; s = 32 + 2 * k
            for j in range(4):
                a(f"    v_pk_fma_f32 v[{h+2*j}:{h+2*j+1}], v[{h+2*j}:{h+2*j+1}], s[{s}:{s+1}], v[{BU+2*j}:{BU+2*j+1}] op_sel_hi:[1,0,1]")
            for j in range(4):
                a(f"    v_cvt_pk_bf16_f32 v{h+j}, v{h+2*j}, v{h+2*j+1}")
    a("L_pl:")
    a(f"    ds_read_b32 v{ONE}, v{Z}")
    a("    s_waitcnt lgkmcnt(0)")
    a(f"    v_readfirstlane_b32 s21, v{ONE}")
    a(f"    s_cmp_ge_u32 s21, {'s23' if (Tmap or Wmap) else T}")
    a("    s_cbranch_scc1 L_st")
    if sl: a(f"    s_sleep {sl}")
    a("    s_branch L_pl")
    a("L_st:")
    for r in range(4):
        va, off = adr[r]; h = RAW + 8 * r
        if T2 and r == 2:
            a("L_pl2:")
            a(f"    ds_read_b32 v{ONE}, v{Z}")
            a("    s_waitcnt lgkmcnt(0)")
            a(f"    v_readfirstlane_b32 s21, v{ONE}")
            a(f"    s_cmp_lt_u32 s21, {T2}")
            a("    s_cbranch_scc1 L_pl2")
        a(f"    global_store_dwordx4 v{va}, v[{h}:{h+3}], s[14:15] offset:{off} {st}")
    a("L_end:")
    a("    s_endpgm")
    nv = max(T0 + 8, ONE + 1)
    a('.section .rodata,"a"')
    a(".p2align 6")
    a(f".amdhsa_kernel {NAME}")
    a(f"  .amdhsa_next_free_vgpr {nv}")
    a(f"  .amdhsa_next_free_sgpr 40")
    a(f"  .amdhsa_accum_offset {(nv+3)//4*4}")
    a("  .amdhsa_group_segment_fixed_size 0")
    a("  .amdhsa_kernarg_size 64")
    a("  .amdhsa_user_sgpr_count 2")
    a("  .amdhsa_user_sgpr_kernarg_segment_ptr 1")
    a("  .amdhsa_system_sgpr_workgroup_id_x 1")
    a("  .amdhsa_float_denorm_mode_32 3")
    a(".end_amdhsa_kernel")
    return "\n".join(a.L) + "\n"
```

```python
from gen18 import gen
s=gen(T=14,sl=0,st="nt",prio=None,initbar="after2")
L=s.split("\n"); out=[]; seen={}
def c(t): out.append("    ; "+t)
for ln in L:
    t=ln.strip()
    if t.startswith(".amdgcn_target"):
        out += [
"; out = LayerNorm(alpha*x + f) * g + b over rows of 512 bf16 (1 KiB).  fp32 maths, two-pass variance.",
"; 256 workgroups (one per CU) x 16 waves x 4 rows; a row is one 16-byte load per lane, the whole problem is in flight at once.",
"; Memory alternates between the two I/O dies every 8 KiB, so every wave takes two rows of an even and two rows of an odd",
"; 8 KiB block (odd waves in the opposite order): both directions of the die-to-die link stay loaded from every CU.",
"; Reads and writes slow each other down when mixed, so a wave keeps its packed results in registers until 14 of the",
"; 16 waves of its workgroup have received their rows (a counter in LDS), then streams them out."]
    if t==".p2align 13":
        out.append("; (8 KiB alignment: the entry then sits in another 8 KiB block than the kernel descriptor, i.e. on the other I/O die,")
    if t=="s_load_dwordx8 s[4:11], s[0:1], 0": ln+="      ; x, f, g, b"
    if t=="s_load_dwordx4 s[12:15], s[0:1], 32": ln+="    ; alpha, out"
    if t=="s_cbranch_scc1 L_end": ln+="                   ; workgroups past the data"
    if t=="v_mov_b32 v7, 0": c("LDS word 0 counts the waves whose rows have arrived (v7 = its address, 0)")
    if t=="s_lshl_b32 s3, s2, 14":
        c("v1 = (wave>>2)*4 MiB + wg*16 KiB + (wave&1)*8 KiB + 4 KiB + (wave&3)*1 KiB + lane*16, v4 = the same in the other 8 KiB block")
        c("rows 0..3 of the wave: v1-4096, v4-4096, v1, v4")
    if t=="v_and_b32 v2, 63, v0": c("v2 = lane*16: this lane's 8 columns of g and b")
    if t.startswith("global_load_dwordx4 v[8:11]"): c("row r: x in v[8+8r:11+8r], f in v[12+8r:15+8r]; g v[40:43], b v[44:47]")
    if t=="s_barrier": ln+="                              ; the counter is zero before anyone adds to it"
    if t=="s_mov_b32 s22, 0x3b000000": ln+="              ; 1/512"
    if t=="v_mov_b32 v3, 0x3727c5ac": ln+="               ; eps = 1e-5"
    if t=="s_lshl_b32 s16, s16, 16": ln+="                ; alpha as fp32"
    if t=="s_waitcnt vmcnt(6)": c("g -> v[48:55], b -> v[56:63] (fp32)")
    if t=="s_waitcnt vmcnt(5)": c("row 0: h = alpha*x + f in v[8:15], lane sum in v2")
    if t=="s_waitcnt vmcnt(4)": c("row 1: h in v[16:23], lane sum in v0")
    if t=="s_waitcnt vmcnt(1)": c("row 2: h in v[24:31], lane sum in v5")
    if t=="s_waitcnt vmcnt(0)": c("all rows are in: count this wave; row 3: h in v[32:39], lane sum in v6")
    if t=="v_permlane32_swap_b32 v2, v0":
        c("joint reduction: each 16-lane row ends with one data row's total (rows 0, 2, 1, 3 in lanes 0, 16, 32, 48)" if "r" not in seen else "same reduction for the sums of squares; d*g fills the wait states")
        seen["r"]=1
    if t=="v_mul_f32 v2, s22, v2": ln+="                  ; means"
    if t.startswith("v_pk_add_f32 v[8:9], v[8:9], s[24:25]"): c("d = h - mean, lane sums of d*d")
    if t=="v_fma_f32 v2, v2, s22, v3": ln+="              ; var + eps"
    if t.startswith("v_pk_fma_f32 v[8:9], v[8:9], s[32:33]"): c("out = (d*g)*rstd + b, packed in place")
    if t=="L_pl:": c("wait until 14 waves have their rows (every wave counts itself first, so this always ends)")
    out.append(ln)
open("../cdna_kernels/standalone__deepnorm__sampling.s","w").write("\n".join(out))
```

```python
from gen1 import HEADER, NAME
from gen2 import DPP16, Emit

def gen(T=14, unit=1, G=4, prio=3, sl=2, ld="nt", st="sc0 sc1", order="a", initbar=True, align=True, Tmap=None, Wmap=None, T2=None, touch=None, stl=None):
    a = Emit()
    a(HEADER + f"; @launch grid=(256,1,1) block=(1024,1,1) lds=64")
    a('.amdgcn_target "amdgcn-amd-amdhsa--gfx950"')
    a(".text")
    a(f".globl {NAME}")
    if align: a(".p2align 13")
    a(".p2align 8")
    a(f".type {NAME},@function")
    a(f"{NAME}:")
    a("    s_load_dwordx8 s[4:11], s[0:1], 0")
    a("    s_load_dwordx4 s[12:15], s[0:1], 32")
    a("    s_cmpk_ge_u32 s2, 256")
    a("    s_cbranch_scc1 L_end")
    if prio is not None: a(f"    s_setprio {prio}")
    Z, ONE, VB = 7, 80, 4
    if Wmap: a("    v_readfirstlane_b32 s23, v0")
    a(f"    v_mov_b32 v{Z}, 0")
    a(f"    ds_write_b32 v{Z}, v{Z}")
    a("    s_lshl_b32 s3, s2, 14")
    a("    s_bitset1_b32 s3, 12")
    a("    v_lshrrev_b32 v3, 8, v0")
    a("    v_and_b32 v1, 255, v0")
    a("    v_lshl_add_u32 v1, v1, 4, s3")
    a("    v_lshl_add_u32 v1, v3, 22, v1")
    a("    v_bfe_u32 v3, v0, 6, 1")
    a("    v_lshl_add_u32 v1, v3, 13, v1")
    a(f"    v_xor_b32 v{VB}, 0x2000, v1")
    a("    v_and_b32 v2, 63, v0")
    a("    v_lshlrev_b32 v2, 4, v2")
    a("    s_waitcnt lgkmcnt(0)")
    if initbar is True: a("    s_barrier")
    RAW = 8
    GP = RAW + 32; BP = GP + 4; GU = BP + 4; BU = GU + 8; T0 = BU + 8
    nv = 81
    EPS = 3
    ACC = [2, 0, 5, 6]
    adr = [(1, -4096), (VB, -4096), (1, 0), (VB, 0)]
    issued = []
    def ld1(kind, r):
        reg = RAW + 8 * r + (4 if kind == "f" else 0)
        va, off = adr[r]
        a(f"    global_load_dwordx4 v[{reg}:{reg+3}], v{va}, {'s[4:5]' if kind=='x' else 's[6:7]'} offset:{off} {ld}")
        issued.append((kind, r))
    def gbp():
        a(f"    global_load_dwordx4 v[{GP}:{GP+3}], v2, s[8:9]")
        a(f"    global_load_dwordx4 v[{BP}:{BP+3}], v2, s[10:11]")
        a("    s_load_dword s16, s[12:13], 0")
        issued.extend([("g", 0), ("b", 0)])
    if order == "g": gbp()
    ld1("x", 0); ld1("x", 1)
    if initbar == "after2": a("    s_barrier")
    if touch == "early":
        a("    s_mov_b64 exec, 1")
        a("    global_load_dword v79, v1, s[14:15] nt")
        a("    s_mov_b64 exec, -1")
        issued.append(("t", 0))
    if order == "a":
        gbp(); ld1("f", 0); ld1("f", 1); ld1("x", 2); ld1("x", 3); ld1("f", 2); ld1("f", 3)
    elif order == "b":
        ld1("f", 0); ld1("f", 1); gbp(); ld1("x", 2); ld1("x", 3); ld1("f", 2); ld1("f", 3)
    elif order == "g":
        ld1("f", 0); ld1("f", 1); ld1("x", 2); ld1("x", 3); ld1("f", 2); ld1("f", 3)
    elif order == "r":
        gbp(); ld1("f", 1); ld1("f", 0); ld1("x", 3); ld1("x", 2); ld1("f", 2); ld1("f", 3)
    elif order == "c":
        ld1("x", 2); ld1("x", 3); gbp(); ld1("f", 0); ld1("f", 1); ld1("f", 2); ld1("f", 3)
    if touch == "last":
        a("    s_mov_b64 exec, 1")
        a("    global_load_dword v79, v1, s[14:15] nt")
        a("    s_mov_b64 exec, -1")
        issued.append(("t", 0))
    if prio is not None: a("    s_setprio 0")
    a("    s_mov_b32 s20, 0xffff0000")
    a("    s_mov_b32 s22, 0x3b000000")
    a(f"    v_mov_b32 v{EPS}, 0x3727c5ac")
    a(f"    v_mov_b32 v{ONE}, 1")
    if Tmap:
        base = min(Tmap); c = sum((t - base) << (4 * i) for i, t in enumerate(Tmap))
        a("    s_and_b32 s23, s2, 7")
        a("    s_lshl_b32 s23, s23, 2")
        a(f"    s_lshr_b32 s23, {c:#x}, s23")
        a("    s_and_b32 s23, s23, 15")
        a(f"    s_add_u32 s23, s23, {base}")
    if Wmap:
        base = min(Wmap); c = sum((t - base) << (4 * i) for i, t in enumerate(Wmap))
        a("    s_lshr_b32 s23, s23, 8")
        a("    s_lshl_b32 s23, s23, 2")
        a(f"    s_lshr_b32 s23, {c:#x}, s23")
        a("    s_and_b32 s23, s23, 15")
        a(f"    s_add_u32 s23, s23, {base}")
    done = [0]
    def wait_for(tag):
        idx = max(i for i, t in enumerate(issued) if t == tag)
        if idx + 1 > done[0]:
            a(f"    s_waitcnt vmcnt({len(issued)-1-idx})")
            done[0] = idx + 1
    def count():
        a("    s_mov_b64 exec, 1")
        a(f"    ds_add_u32 v{Z}, v{ONE}")
        a("    s_mov_b64 exec, -1")
    def hrow(x, f, acc, t):
        a(f"    v_lshlrev_b32 v{t}, 16, v{x}")
        a(f"    v_and_b32 v{t+1}, s20, v{x}")
        a(f"    v_lshlrev_b32 v{t+2}, 16, v{x+1}")
        a(f"    v_and_b32 v{t+3}, s20, v{x+1}")
        a(f"    v_lshlrev_b32 v{x}, 16, v{f}")
        a(f"    v_and_b32 v{x+1}, s20, v{f}")
        a(f"    v_lshlrev_b32 v{t+4}, 16, v{x+2}")
        a(f"    v_and_b32 v{t+5}, s20, v{x+2}")
        a(f"    v_lshlrev_b32 v{t+6}, 16, v{x+3}")
        a(f"    v_and_b32 v{t+7}, s20, v{x+3}")
        a(f"    v_lshlrev_b32 v{x+2}, 16, v{f+1}")
        a(f"    v_and_b32 v{x+3}, s20, v{f+1}")
        a(f"    v_pk_fma_f32 v[{x}:{x+1}], v[{t}:{t+1}], s[16:17], v[{x}:{x+1}] op_sel_hi:[1,0,1]")
        a(f"    v_lshlrev_b32 v{f}, 16, v{f+2}")
        a(f"    v_and_b32 v{f+1}, s20, v{f+2}")
        a(f"    v_pk_fma_f32 v[{x+2}:{x+3}], v[{t+2}:{t+3}], s[16:17], v[{x+2}:{x+3}] op_sel_hi:[1,0,1]")
        a(f"    v_lshlrev_b32 v{f+2}, 16, v{f+3}")
        a(f"    v_and_b32 v{f+3}, s20, v{f+3}")
        a(f"    v_pk_fma_f32 v[{f}:{f+1}], v[{t+4}:{t+5}], s[16:17], v[{f}:{f+1}] op_sel_hi:[1,0,1]")
        a(f"    v_pk_add_f32 v[{t}:{t+1}], v[{x}:{x+1}], v[{x+2}:{x+3}]")
        a(f"    v_pk_fma_f32 v[{f+2}:{f+3}], v[{t+6}:{t+7}], s[16:17], v[{f+2}:{f+3}] op_sel_hi:[1,0,1]")
        a(f"    v_pk_add_f32 v[{t}:{t+1}], v[{t}:{t+1}], v[{f}:{f+1}]")
        a(f"    v_pk_add_f32 v[{t}:{t+1}], v[{t}:{t+1}], v[{f+2}:{f+3}]")
        a(f"    v_add_f32 v{acc}, v{t}, v{t+1}")
    def red(regs, fillers):
        fillers = list(fillers)
        def gap(n=2):
            k = 0
            while k < n and fillers:
                a(fillers.pop(0)); k += 1
            if n - k == 2: a("    s_nop 1")
            elif n - k == 1: a("    s_nop 0")
        if len(regs) == 2:
            A, B = regs
            gap(); a(f"    v_permlane32_swap_b32 v{A}, v{B}"); a(f"    v_add_f32 v{A}, v{A}, v{B}")
            for d in DPP16 + ["row_bcast:15 row_mask:0xa bank_mask:0xf"]:
                gap(); a(f"    v_add_f32_dpp v{A}, v{A}, v{A} {d}")
            lanes = [31, 63]
        else:
            A, B, C, D = regs
            gap(1); a(f"    v_permlane32_swap_b32 v{A}, v{B}"); a(f"    v_permlane32_swap_b32 v{C}, v{D}")
            a(f"    v_add_f32 v{A}, v{A}, v{B}"); a(f"    v_add_f32 v{C}, v{C}, v{D}")
            gap(); a(f"    v_permlane16_swap_b32 v{A}, v{C}"); a(f"    v_add_f32 v{A}, v{A}, v{C}")
            for d in DPP16:
                gap(); a(f"    v_add_f32_dpp v{A}, v{A}, v{A} {d}")
            lanes = [0, 32, 16, 48]
        for fl in fillers: a(fl)
        return regs[0], lanes
    def unp():
        wait_for(("b", 0))
        for j in range(4):
            a(f"    v_lshlrev_b32 v{GU+2*j}, 16, v{GP+j}")
            a(f"    v_and_b32 v{GU+2*j+1}, s20, v{GP+j}")
            a(f"    v_lshlrev_b32 v{BU+2*j}, 16, v{BP+j}")
            a(f"    v_and_b32 v{BU+2*j+1}, s20, v{BP+j}")
    a("    s_waitcnt lgkmcnt(0)")
    a("    s_lshl_b32 s16, s16, 16")
    gb_before = issued.index(("b", 0)) < issued.index(("f", 0))
    gbd = False
    if gb_before: unp(); gbd = True
    outs = {}
    for g0 in range(0, 4, G):
        rows = list(range(g0, g0 + G)); acc = ACC[:G]
        for k, r in enumerate(rows):
            wait_for(("f", r))
            if r == 3 or (unit == 2 and r == 1): count()
            hrow(RAW + 8 * r, RAW + 8 * r + 4, acc[k], T0)
            if r == 1 and not gbd: unp(); gbd = True
        A, lanes = red(acc, [])
        a(f"    v_mul_f32 v{A}, s22, v{A}")
        a("    s_nop 0")
        for k in range(G): a(f"    v_readlane_b32 s{24+2*k}, v{A}, {lanes[k]}")
        if G == 2: a("    s_nop 0")
        for k, r in enumerate(rows):
            h = RAW + 8 * r; t = T0 + 4 * (k & 1); s = 24 + 2 * k
            for j in range(4):
                a(f"    v_pk_add_f32 v[{h+2*j}:{h+2*j+1}], v[{h+2*j}:{h+2*j+1}], s[{s}:{s+1}] op_sel_hi:[1,0] neg_lo:[0,1] neg_hi:[0,1]")
            a(f"    v_pk_mul_f32 v[{t}:{t+1}], v[{h}:{h+1}], v[{h}:{h+1}]")
            a(f"    v_pk_mul_f32 v[{t+2}:{t+3}], v[{h+2}:{h+3}], v[{h+2}:{h+3}]")
            a(f"    v_pk_fma_f32 v[{t}:{t+1}], v[{h+4}:{h+5}], v[{h+4}:{h+5}], v[{t}:{t+1}]")
            a(f"    v_pk_fma_f32 v[{t+2}:{t+3}], v[{h+6}:{h+7}], v[{h+6}:{h+7}], v[{t+2}:{t+3}]")
            a(f"    v_pk_add_f32 v[{t}:{t+1}], v[{t}:{t+1}], v[{t+2}:{t+3}]")
            a(f"    v_add_f32 v{acc[k]}, v{t}, v{t+1}")
        dg = [f"    v_pk_mul_f32 v[{RAW+8*r+2*j}:{RAW+8*r+2*j+1}], v[{RAW+8*r+2*j}:{RAW+8*r+2*j+1}], v[{GU+2*j}:{GU+2*j+1}]" for r in rows for j in range(4)]
        A, lanes = red(acc, dg)
        a(f"    v_fma_f32 v{A}, v{A}, s22, v{EPS}")
        a(f"    v_rsq_f32 v{A}, v{A}")
        a("    s_nop 0")
        for k in range(G): a(f"    v_readlane_b32 s{32+2*k}, v{A}, {lanes[k]}")
        if G == 2: a("    s_nop 0")
        for k, r in enumerate(rows):
            h = RAW + 8 * r; s = 32 + 2 * k
            for j in range(4):
                a(f"    v_pk_fma_f32 v[{h+2*j}:{h+2*j+1}], v[{h+2*j}:{h+2*j+1}], s[{s}:{s+1}], v[{BU+2*j}:{BU+2*j+1}] op_sel_hi:[1,0,1]")
            for j in range(4):
                a(f"    v_cvt_pk_bf16_f32 v{h+j}, v{h+2*j}, v{h+2*j+1}")
    a("L_pl:")
    a(f"    ds_read_b32 v{ONE}, v{Z}")
    a("    s_waitcnt lgkmcnt(0)")
    a(f"    v_readfirstlane_b32 s21, v{ONE}")
    a(f"    s_cmp_ge_u32 s21, {'s23' if (Tmap or Wmap) else T}")
    a("    s_cbranch_scc1 L_st")
    if sl: a(f"    s_sleep {sl}")
    a("    s_branch L_pl")
    a("L_st:")
    for r in range(4):
        va, off = adr[r]; h = RAW + 8 * r
        if T2 and r == 2:
            a("L_pl2:")
            a(f"    ds_read_b32 v{ONE}, v{Z}")
            a("    s_waitcnt lgkmcnt(0)")
            a(f"    v_readfirstlane_b32 s21, v{ONE}")
            a(f"    s_cmp_lt_u32 s21, {T2}")
            a("    s_cbranch_scc1 L_pl2")
        a(f"    global_store_dwordx4 v{va}, v[{h}:{h+3}], s[14:15] offset:{off} {stl[r] if stl else st}")
    a("L_end:")
    a("    s_endpgm")
    nv = max(T0 + 8, ONE + 1)
    a('.section .rodata,"a"')
    a(".p2align 6")
    a(f".amdhsa_kernel {NAME}")
    a(f"  .amdhsa_next_free_vgpr {nv}")
    a(f"  .amdhsa_next_free_sgpr 40")
    a(f"  .amdhsa_accum_offset {(nv+3)//4*4}")
    a("  .amdhsa_group_segment_fixed_size 0")
    a("  .amdhsa_kernarg_size 64")
    a("  .amdhsa_user_sgpr_count 2")
    a("  .amdhsa_user_sgpr_kernarg_segment_ptr 1")
    a("  .amdhsa_system_sgpr_workgroup_id_x 1")
    a("  .amdhsa_float_denorm_mode_32 3")
    a(".end_amdhsa_kernel")
    return "\n".join(a.L) + "\n"
```

```python
from gen18 import gen
from mkc import multi
B=dict(T=14,sl=0,st="nt",prio=None,initbar="after2")
V={"fin2":None,"k_15_14":None,"k_15_13":None,
 "k_u30_28":dict(B,unit=2,Tmap=[30]*4+[28]*4),
}
for k,v in V.items():
    if v is not None: open(f"v/{k}.s","w").write(gen(**v))
multi(list(V),n=3)
```

```python
from gen18 import gen
from mkc import multi
B=dict(T=14,sl=0,prio=None,initbar="after2")
def wb(st, mask, wait=True, nwg=256):
    s=gen(**dict(B,st=st))
    s=s.replace("    v_mov_b32 v7, 0\n","    v_readfirstlane_b32 s23, v0\n    v_mov_b32 v7, 0\n",1)
    tail=f"    s_lshr_b32 s23, s23, 6\n    s_bitcmp0_b32 {mask:#x}, s23\n    s_cbranch_scc1 L_end\n    s_cmpk_ge_u32 s2, {nwg}\n    s_cbranch_scc1 L_end\n"+("    s_waitcnt vmcnt(0)\n" if wait else "")+"    buffer_wbl2 sc1\n"
    return s.replace("L_end:\n    s_endpgm", tail+"L_end:\n    s_endpgm")
V={"fin2":None,
 "b_w0":wb("",0x0001),"b_w11":wb("",0x0800),"b_all":wb("",0xffff),"b_w11_8":wb("",0x0800,nwg=8),"b_grp":wb("",0x8888),
}
for k,v in V.items():
    if v is not None: open(f"v/{k}.s","w").write(v)
multi(list(V),n=2)
```
